```python
import torch

def _softmax(x, axis=-1):
    return torch.softmax(x, dim=axis)
def _gelu(x):
    return torch.nn.functional.gelu(x, approximate="tanh")
def _silu(x):
    return torch.nn.functional.silu(x)
def _sigmoid(x):
    return torch.sigmoid(x)
def _layernorm(x, axis=-1, eps=1e-5):
    m = x.mean(dim=axis, keepdim=True)
    v = x.var(dim=axis, keepdim=True, unbiased=False)
    return (x - m) / torch.sqrt(v + eps)
def _scatter_add(tgt, idx, src, axis=0):
    return tgt.clone().index_add_(axis, idx, src)
def _segment_sum(src, seg, n):
    out = torch.zeros((n,) + src.shape[1:], dtype=src.dtype)
    return out.index_add_(0, seg, src)
def _pad(x, pw):
    flat = tuple(v for pair in reversed(pw) for v in pair)
    return torch.nn.functional.pad(x, flat)

kernel_name = 'concat_heads__softmax_full_mha__ssm_conv_s4d__prompt'

def setup_inputs():

    _w = (lambda a: (lambda t: t.to(torch.bfloat16) if t.is_floating_point() else t)(torch.as_tensor(a)))
    def _A_setup():
        B, S, D = 1, 2048, 512
        return {
            "x": _w((lambda *s: torch.randn(*s, dtype=torch.bfloat16) * 0.2)(B, S, D)),
            "wqkv": _w((lambda *s: torch.randn(*s, dtype=torch.bfloat16) * 0.2)(D, 3 * D)),
            "wo": _w((lambda *s: torch.randn(*s, dtype=torch.bfloat16) * 0.05)(D, D)),
        }
    _A_in = _A_setup()

    def _B_setup():
        Bsz, L, D, N = 1, 2048, 512, 128
        return {
            "u": _w((lambda *s: torch.randn(*s, dtype=torch.bfloat16) * 0.05)(Bsz, L, D)),
            "log_A_real": _w((lambda *s: torch.randn(*s, dtype=torch.bfloat16) * 6.4)(D, N) * 0.5),
            "A_imag": _w((lambda *s: torch.randn(*s, dtype=torch.bfloat16) * 0.05)(D, N) * 3.14),
            "C_real": _w((lambda *s: torch.randn(*s, dtype=torch.bfloat16) * 0.4)(D, N) / N ** 0.5),
            "C_imag": _w((lambda *s: torch.randn(*s, dtype=torch.bfloat16) * 0.4)(D, N) / N ** 0.5),
            "log_dt": _w((lambda *s: torch.randn(*s, dtype=torch.bfloat16) * 0.05)(D) * 0.5 - 4.0),
            "D_skip": _w((lambda *s: torch.randn(*s, dtype=torch.bfloat16) * 0.05)(D)),
        }
    _B_in = _B_setup()

    return {
        "A_x": _A_in["x"],
        "A_wqkv": _A_in["wqkv"],
        "A_wo": _A_in["wo"],
        "B_u": _B_in["u"],
        "B_log_A_real": _B_in["log_A_real"],
        "B_A_imag": _B_in["A_imag"],
        "B_C_real": _B_in["C_real"],
        "B_C_imag": _B_in["C_imag"],
        "B_log_dt": _B_in["log_dt"],
        "B_D_skip": _B_in["D_skip"],
    }

def reference(A_x, A_wqkv, A_wo, B_u, B_log_A_real, B_A_imag, B_C_real, B_C_imag, B_log_dt, B_D_skip):
    def _A_ref(x, wqkv, wo):
        B, S, D = x.shape
        H = 32; Dh = D // H
        qkv = (lambda x, *d: x.permute(*d))((x @ wqkv).reshape(B, S, 3, H, Dh), 2, 0, 3, 1, 4)
        q, k, v = qkv[0], qkv[1], qkv[2]
        scale = Dh ** -0.5
        scores = torch.einsum("bhqd,bhkd->bhqk", q, k) * scale
        p = _softmax(scores, axis=-1)
        o = torch.einsum("bhqk,bhkd->bhqd", p, v)
        return (lambda x, *d: x.permute(*d))(o, 0, 2, 1, 3).reshape(B, S, D) @ wo

    def _B_ref(u, log_A_real, A_imag, C_real, C_imag, log_dt, D_skip):
        L = u.shape[1]
        dt = torch.exp(log_dt)
        A = -torch.exp(log_A_real) + 1j * A_imag
        C = (C_real + 1j * C_imag) * dt[:, None]
        pos = (lambda x, dt: x.to(dt))(torch.arange(L), log_dt.dtype)
        P = torch.exp((A * dt[:, None])[:, :, None] * pos[None, None, :])
        K = 2.0 * torch.einsum("dn,dnl->dl", C, P).real
        L2 = 2 * L
        u_t = (lambda x, *d: x.permute(*d))(u, 0, 2, 1)
        Kf = (lambda x, *a, **k: torch.fft.rfft(x.float(), *a, **k))(K, L2)
        Uf = (lambda x, *a, **k: torch.fft.rfft(x.float(), *a, **k))(u_t, L2)
        y = (lambda x, *a, **k: torch.fft.irfft(x, *a, **k).to(torch.bfloat16))(Uf * Kf[None, :, :], L2)[:, :, :L]
        y = (lambda x, *d: x.permute(*d))(y, 0, 2, 1)
        return y + u * D_skip[None, None, :]

    a = _A_ref(A_x, A_wqkv, A_wo)
    b = _B_ref(B_u, B_log_A_real, B_A_imag, B_C_real, B_C_imag, B_log_dt, B_D_skip)
    return torch.concatenate([a, b], axis=-1)
```

```python
import re

TRANS = ('v_exp_f32','v_log_f32','v_rcp_f32','v_rsq_f32','v_sqrt_f32','v_sin_f32','v_cos_f32',
         'v_exp_f16','v_rcp_iflag_f32')

def regs_of(tok):
    tok = tok.strip()
    neg = tok.lstrip('-')
    if neg.startswith('abs(') and neg.endswith(')'): neg = neg[4:-1]
    if neg.startswith('|') and neg.endswith('|'): neg = neg[1:-1]
    m = re.fullmatch(r'([vsa])(\d+)', neg)
    if m: return {(m.group(1), int(m.group(2)))}
    m = re.fullmatch(r'([vsa])\[(\d+):(\d+)\]', neg)
    if m: return {(m.group(1), i) for i in range(int(m.group(2)), int(m.group(3))+1)}
    if neg in ('vcc','vcc_lo','vcc_hi'): return {('x','vcc')}
    if neg in ('exec','exec_lo','exec_hi'): return {('x','exec')}
    if neg == 'm0': return {('x','m0')}
    return set()

class Ins:
    __slots__ = ('text','op','ops','kind','defs','uses','mods','passes','srcC','srcAB')
    def __init__(self, text):
        self.text = text
        t = text.split(';')[0].strip()
        self.op = None; self.ops = []; self.kind = 'other'; self.defs=set(); self.uses=set()
        self.mods=''; self.passes=0; self.srcC=set(); self.srcAB=set()
        if not t or t.endswith(':') or t.startswith('.'):
            self.kind = 'label' if t.endswith(':') else 'directive'
            return
        parts = t.split(None, 1)
        self.op = parts[0]
        rest = parts[1] if len(parts) > 1 else ''
        ops = []; cur=''; depth=0
        for ch in rest:
            if ch in '[(': depth+=1
            if ch in '])': depth-=1
            if ch==',' and depth==0: ops.append(cur.strip()); cur=''
            else: cur+=ch
        if cur.strip(): ops.append(cur.strip())
        if ops:
            last = ops[-1].split(None,1)
            if len(last)>1 and not last[0].startswith('abs'):
                ops[-1]=last[0]; self.mods=last[1]
        self.ops = ops
        op = self.op
        R = [regs_of(o) for o in ops]
        if op.startswith('v_mfma') or op.startswith('v_smfmac'):
            self.kind='mfma'
            self.defs=R[0]; self.srcAB=R[1]|R[2]; self.srcC=R[3] if len(R)>3 else set()
            self.uses=self.srcAB|self.srcC
            self.passes = 8 if '32x32' in op else 4
        elif op.startswith('v_'):
            self.kind='valu'
            if op.startswith('v_cmp'):
                self.defs=R[0]; self.uses=set().union(*R[1:]) if len(R)>1 else set()
                if op.startswith('v_cmpx'): self.defs=self.defs|{('x','exec')}
            elif op.startswith('v_permlane') and 'swap' in op:
                self.defs=R[0]|R[1]; self.uses=R[0]|R[1]
            elif op.startswith(('v_add_co','v_sub_co','v_addc_co','v_subb_co','v_subrev_co')):
                self.defs=R[0]|R[1]; self.uses=set().union(*R[2:])
            elif op.startswith(('v_fmac','v_pk_fmac','v_dot2c','v_writelane')):
                self.defs=R[0]; self.uses=set().union(*R)
            else:
                self.defs=R[0] if R else set(); self.uses=set().union(*R[1:]) if len(R)>1 else set()
                if op.startswith('v_cndmask') and len(R)==3: self.uses|={('x','vcc')}
                if 'UNUSED_PRESERVE' in self.mods: self.uses|=self.defs
            if 'dpp' in op or 'row_' in self.mods or 'quad_perm' in self.mods or 'wave_' in self.mods:
                self.uses |= set()
        elif op.startswith('ds_'):
            self.kind='ds'
            if op.startswith(('ds_read','ds_bpermute','ds_permute','ds_swizzle')) or (op.startswith('ds_add') and 'rtn' in op):
                self.defs=R[0]; self.uses=set().union(*R[1:]) if len(R)>1 else set()
                if 'd16' in op: self.uses|=R[0]
            else:
                self.uses=set().union(*R)
        elif op.startswith(('buffer_','global_','flat_','scratch_')):
            self.kind='vmem'
            is_load = '_load' in op
            lds = 'lds' in self.mods.split() or op.startswith('global_load_lds')
            if lds:
                self.uses=set().union(*R)|{('x','m0')}
            elif is_load:
                self.defs=R[0]; self.uses=set().union(*R[1:])
                if 'd16' in op: self.uses|=R[0]
            elif 'atomic' in op and ('sc0' in self.mods.split()):
                self.uses=set().union(*R)
                self.defs = R[0] if op.startswith('buffer') else R[0]
            else:
                self.uses=set().union(*R) if R else set()
        elif op.startswith('s_'):
            self.kind='salu'
            if op.startswith(('s_cmp','s_bitcmp')):
                self.uses=set().union(*R)
            elif op.startswith(('s_cbranch','s_branch','s_waitcnt','s_barrier','s_nop','s_endpgm','s_sleep','s_setprio','s_sethalt')):
                pass
            elif op.startswith(('s_load','s_buffer_load','s_memtime','s_memrealtime')):
                self.kind='smem'; self.defs=R[0]; self.uses=set().union(*R[1:]) if len(R)>1 else set()
            elif 'saveexec' in op:
                self.defs=R[0]|{('x','exec')}; self.uses=set().union(*R[1:])|{('x','exec')}
            else:
                self.defs=R[0] if R else set(); self.uses=set().union(*R[1:]) if len(R)>1 else set()

    def states(self):
        if self.kind in ('label','directive'): return 0
        if self.op=='s_nop': return int(self.ops[0],0)+1
        return 1

def vonly(s): return {r for r in s if r[0] in 'va'}
def sonly(s): return {r for r in s if r[0]=='s' or r==('x','vcc')}

def required(p, c):
    need = 0
    if p.kind=='valu':
        pv = vonly(p.defs); ps = sonly(p.defs)
        if c.kind=='mfma' and pv & c.uses: need=max(need,2)
        if c.kind=='valu':
            if p.op.replace('_e32','').replace('_e64','') in TRANS and not c.op.replace('_e32','').replace('_e64','') in TRANS and pv & c.uses: need=max(need,1)
            if p.op.replace('_e32','').replace('_e64','') in TRANS and pv & c.uses: need=max(need,1)
            if c.op.startswith(('v_readfirstlane','v_readlane')) and pv & c.uses: need=max(need,1)
            if c.op.startswith('v_permlane') and pv & c.uses: need=max(need,2)
            if ('dpp' in c.op or 'row_' in c.mods or 'quad_perm' in c.mods or 'wave_' in c.mods or 'row_bcast' in c.mods) and pv & c.uses: need=max(need,2)
            if ps & c.uses:
                need=max(need, 4 if c.op.startswith(('v_readlane','v_writelane')) else 2)
            if 'sdwa' in p.op and pv & (c.uses|c.defs): need=max(need,1)
            if ('x','exec') in p.defs:
                need=max(need, 5 if ('dpp' in c.op) else (4 if c.op.startswith(('v_readlane','v_readfirstlane','v_writelane','v_permlane')) else 0))
        if c.kind=='vmem' and ps & c.uses: need=max(need,5)
        if c.kind=='mfma' and ('x','exec') in p.defs: need=max(need,4)
        if c.kind in ('salu','smem') and ps & c.uses: need=max(need,1)
    if p.kind=='valu' and p.op.startswith('v_dot'):
        pv = vonly(p.defs)
        if pv & (c.uses|c.defs):
            same_c = (c.kind=='valu' and c.op==p.op and len(c.ops)>3 and regs_of(c.ops[3])&pv and not ((regs_of(c.ops[1])|regs_of(c.ops[2]))&pv))
            if not same_c: need=max(need,3)
    if p.kind=='mfma':
        n = p.passes
        D = p.defs
        big = {4:8, 8:12}[n]
        if c.kind=='mfma':
            if D & c.srcAB: need=max(need,big)
            if D & c.srcC and not (c.srcC==D and c.passes==p.passes): need=max(need,{4:6,8:10}[n])
            if D & c.defs and not (c.srcC==D) and not (c.defs==D and c.passes==p.passes and not c.srcC): need=max(need, big)
        elif c.kind=='valu':
            if D & (c.uses|c.defs): need=max(need,big)
            if p.srcC & vonly(c.defs): need=max(need,{4:3,8:7}[n])
        elif c.kind in ('vmem','ds'):
            if D & (c.uses|c.defs): need=max(need,big)
    if p.kind=='salu':
        if ('x','m0') in p.defs and c.kind=='vmem' and ('x','m0') in c.uses: need=max(need,1)
    if p.kind=='vmem' and ('store' in p.op) and ('x3' in p.op or 'x4' in p.op):
        data = vonly(regs_of(p.ops[0])) if p.op.startswith('buffer') else vonly(regs_of(p.ops[1]))
        if data & vonly(c.defs): need=max(need, 2 if c.kind=='valu' else 1)
    if p.kind=='ds' and p.op.startswith('ds_write') and ('b128' in p.op or 'b96' in p.op):
        pass
    return need

WINDOW = 14

class Asm:
    def __init__(self):
        self.lines=[]
    def __call__(self, s):
        for l in s.split('\n'):
            l=l.strip()
            if l: self.lines.append(l)
    def raw(self, s): self.lines.append(('raw', s))
    def comment(self, s): self.lines.append('; '+s)

def fix_hazards(lines, verbose=False):
    ins=[Ins(l) if isinstance(l,str) else None for l in lines]
    raw=[l for l in lines]
    total=0
    branch_targets={}
    def rebuild_targets():
        branch_targets.clear()
        for k,y in enumerate(ins):
            if y is not None and y.kind=='salu' and y.op and y.op.startswith(('s_cbranch','s_branch')) and y.ops:
                branch_targets.setdefault(y.ops[0],[]).append(k)
    rebuild_targets()
    i=0
    while i<len(ins):
        c=ins[i]
        if c is not None and c.kind not in ('label','directive'):
            res=[]
            stack=[(i-1,0,False)]
            visited=set()
            while stack:
                j,dist,viabranch=stack.pop()
                while j>=0 and dist<WINDOW:
                    if (j,dist) in visited: break
                    visited.add((j,dist))
                    x=ins[j]
                    if x is None: j-=1; continue
                    if x.kind=='label':
                        name=x.text.split(';')[0].strip()[:-1]
                        for k in branch_targets.get(name,[]):
                            stack.append((k,dist,True))
                        j-=1; viabranch=False; continue
                    if x.kind=='directive': j-=1; continue
                    if x.op=='s_endpgm': break
                    if x.op=='s_branch' and not viabranch: break
                    viabranch=False
                    res.append((x,dist))
                    dist+=x.states()
                    j-=1
            pad=0
            for p,dist in res:
                r=required(p,c)
                if r>dist: pad=max(pad,r-dist)
            if pad>0:
                n=pad
                newl=[]
                while n>0:
                    k=min(n,16); newl.append(f's_nop {k-1}'); n-=k
                if verbose: print(f'hazard: +{pad} before: {c.text}')
                for t in newl:
                    ins.insert(i,Ins(t)); raw.insert(i,t); i+=1
                total+=pad
                rebuild_targets()
        i+=1
    return raw,total

def render(lines):
    out=[]
    for l in lines:
        if isinstance(l,tuple): out.append(l[1])
        elif l.endswith(':') or l.startswith('.') or l.startswith(';'): out.append(l)
        else: out.append('    '+l)
    return '\n'.join(out)+'\n'
```

```python
from asmlib import *

NAME = 'concat_heads__softmax_full_mha__ssm_conv_s4d__prompt'

WS_KV   = 0x000000
WS_Q    = 0x400000
WS_UT   = 0x600000
WS_O    = 0x800000
WS_YT   = 0xA00000
WS_KN   = 0xC00000
WS_VN   = 0xC02000
WS_SIZE = 0x10000000

K_X, K_W, K_WO, K_U, K_LA, K_AI, K_CR, K_CI, K_LDT, K_DSK, K_OUT, K_DBG, K_WS = [8*i for i in range(13)]

def srd(a, dst, base, nbytes):
    a(f's_mov_b32 s{dst}, s{base}')
    a(f's_and_b32 s{dst+1}, s{base+1}, 0xffff')
    a(f's_mov_b32 s{dst+2}, {hex(nbytes)}')
    a(f's_mov_b32 s{dst+3}, 0x20000')

def kernel_header(label):
    return [f'.globl {label}', '.p2align 8', f'.type {label},@function', f'{label}:']

def kernel_desc(label, vgprs, sgprs=96):
    acc = (vgprs+3)//4*4
    return f'''.amdhsa_kernel {label}
  .amdhsa_next_free_vgpr {vgprs}
  .amdhsa_next_free_sgpr {sgprs}
  .amdhsa_accum_offset {acc}
  .amdhsa_group_segment_fixed_size 0
  .amdhsa_kernarg_size 104
  .amdhsa_user_sgpr_count 2
  .amdhsa_user_sgpr_kernarg_segment_ptr 1
  .amdhsa_system_sgpr_workgroup_id_x 1
  .amdhsa_float_denorm_mode_32 3
.end_amdhsa_kernel'''

def wave_max(a, v, tmp):
    for r in (1,2,4,8):
        a(f'v_max_f32_dpp {v}, {v}, {v} row_ror:{r} row_mask:0xf bank_mask:0xf')
    a(f'v_mov_b32 {tmp}, {v}')
    a(f'v_permlane16_swap_b32 {v}, {tmp}')
    a(f'v_max_f32 {v}, {v}, {tmp}')
    a(f'v_mov_b32 {tmp}, {v}')
    a(f'v_permlane32_swap_b32 {v}, {tmp}')
    a(f'v_max_f32 {v}, {v}, {tmp}')

def half_sum(a, v, tmp):
    a(f'v_mov_b32 {tmp}, {v}')
    a(f'v_permlane32_swap_b32 {v}, {tmp}')
    a(f'v_add_f32 {v}, {v}, {tmp}')


import os
STAMP = os.environ.get('STAMP','0')=='1'
WS_ST = 0xD00000
ST0 = 64
class Stamps:
    def __init__(self, kid): self.n=0; self.kid=kid
    def mark(self, a):
        if not STAMP: return
        r = ST0 + 4*self.n
        a(f's_memrealtime s[{r}:{r+1}]')
        a(f's_memtime s[{r+2}:{r+3}]')
        self.n += 1
    def flush(self, a, sws, swv):
        if not STAMP: return
        a('s_waitcnt lgkmcnt(0)')
        a(f's_lshl_b32 s60, s2, 3')
        a(f's_add_u32 s60, s60, s{swv}')
        a(f's_lshl_b32 s60, s60, 6')
        a(f's_add_u32 s60, s60, {WS_ST + self.kid*0x20000}')
        a('s_mov_b64 exec, 1')
        a('v_mov_b32 v3, 0')
        for i in range(self.n):
            a(f'v_mov_b32 v4, s{ST0+4*i}')
            a(f'v_mov_b32 v5, s{ST0+4*i+2}')
            a(f'buffer_store_dwordx2 v[4:5], v3, s[{sws}:{sws+3}], s60 offen offset:{8*i}')
        a('s_waitcnt vmcnt(0)')
```

```python
from common import *

QSCALE = 0.25*1.4426950408889634

def f32bits(x):
    import struct
    return struct.unpack('<I', struct.pack('<f', x))[0]

LDS_UT = 131072
K1_LDS = LDS_UT + 64*132

def gen_k1(a, label):
    sTB, sX, sWv = 3, 4, 5
    SX, SW, SU, SWS = 12, 16, 20, 24
    sM0 = 28
    sSo = 32
    a(f's_cmp_ge_u32 s2, 256')
    a(f's_cbranch_scc1 {label}_end')
    st = Stamps(0); st.mark(a)
    a(f's_load_dwordx4 s[36:39], s[0:1], {K_X}')
    a(f's_load_dwordx2 s[40:41], s[0:1], {K_U}')
    a(f's_load_dwordx2 s[42:43], s[0:1], {K_WS}')
    a(f's_and_b32 s{sX}, s2, 7')
    a(f's_lshr_b32 s{sTB}, s2, 3')
    vL, vT0, vT1, vT2, vT3 = 1, 2, 3, 4, 5
    a(f'v_lshrrev_b32 v{vT0}, 6, v0')
    a(f'v_and_b32 v{vL}, 63, v0')
    a(f'v_readfirstlane_b32 s{sWv}, v{vT0}')
    vXo, vWo, vQo, vUo = 6, 7, 8, 9
    a(f'v_lshrrev_b32 v{vT0}, 3, v{vL}')
    a(f's_lshl_b32 s6, s{sWv}, 3')
    a(f'v_add_u32 v{vT0}, s6, v{vT0}')
    a(f'v_lshrrev_b32 v{vT1}, 1, v{vT0}')
    a(f'v_and_b32 v{vT1}, 7, v{vT1}')
    a(f'v_and_b32 v{vT2}, 7, v{vL}')
    a(f'v_xor_b32 v{vT1}, v{vT1}, v{vT2}')
    a(f's_lshl_b32 s7, s{sTB}, 6')
    a(f'v_add_u32 v{vT3}, s7, v{vT0}')
    a(f'v_lshlrev_b32 v{vXo}, 10, v{vT3}')
    a(f'v_lshl_add_u32 v{vXo}, v{vT1}, 4, v{vXo}')
    a(f's_movk_i32 s8, 3072')
    a(f'v_mul_lo_u32 v{vQo}, v{vT0}, s8')
    a(f'v_lshrrev_b32 v{vT1}, 2, v{vT2}')
    a(f'v_bfe_u32 v{vT3}, v{vL}, 4, 1')
    a(f'v_xor_b32 v{vT1}, v{vT1}, v{vT3}')
    a(f'v_lshl_add_u32 v{vQo}, v{vT1}, 6, v{vQo}')
    a(f'v_and_b32 v{vT1}, 3, v{vT2}')
    a(f'v_lshl_add_u32 v{vQo}, v{vT1}, 4, v{vQo}')
    a(f's_lshl_b32 s9, s{sX}, 7')
    a(f'v_add_u32 v{vQo}, s9, v{vQo}')
    a(f'v_lshrrev_b32 v{vT0}, 4, v{vL}')
    a(f'v_add_u32 v{vT1}, s6, v{vT0}')
    a(f'v_mul_lo_u32 v{vWo}, v{vT1}, s8')
    a(f'v_bfe_u32 v{vT1}, v{vL}, 2, 2')
    a(f'v_xor_b32 v{vT1}, v{vT1}, v{vT0}')
    a(f'v_and_b32 v{vT2}, 1, v{vT1}')
    a(f'v_lshl_add_u32 v{vWo}, v{vT2}, 6, v{vWo}')
    a(f'v_lshrrev_b32 v{vT2}, 1, v{vT1}')
    a(f'v_lshl_add_u32 v{vWo}, v{vT2}, 10, v{vWo}')
    a(f'v_and_b32 v{vT2}, 3, v{vL}')
    a(f'v_lshl_add_u32 v{vWo}, v{vT2}, 4, v{vWo}')
    a(f's_add_u32 s10, s9, 1024')
    a(f'v_add_u32 v{vWo}, s10, v{vWo}')
    a(f'v_lshrrev_b32 v{vT0}, 3, v0')
    a(f'v_add_u32 v{vT1}, s7, v{vT0}')
    a(f'v_lshlrev_b32 v{vUo}, 10, v{vT1}')
    a(f'v_and_b32 v{vT1}, 7, v0')
    a(f'v_lshl_add_u32 v{vUo}, v{vT1}, 4, v{vUo}')
    a(f'v_add_u32 v{vUo}, s9, v{vUo}')
    a(f's_lshl_b32 s{sM0}, s{sWv}, 10')
    a(f's_lshl_b32 s{sM0+1}, s{sWv}, 11')
    a(f's_add_u32 s{sM0+1}, s{sM0+1}, 8192')
    a(f's_add_u32 s{sM0+2}, s{sM0+1}, 1024')
    a(f's_add_u32 s{sM0+3}, s{sM0}, 24576')
    a('s_waitcnt lgkmcnt(0)')
    srd(a, SX, 36, 2048*1024)
    srd(a, SW, 38, 512*3072)
    srd(a, SU, 40, 2048*1024)
    srd(a, SWS, 42, WS_SIZE)
    vU = 10
    a(f'buffer_load_dwordx4 v[{vU}:{vU+3}], v{vUo}, s[{SU}:{SU+3}], 0 offen')

    def dma(c):
        slot = c % 4
        a(f's_add_u32 m0, s{sM0}, {slot*32768}')
        a(f's_movk_i32 s{sSo}, {128*c}')
        a(f'buffer_load_dwordx4 v{vXo}, s[{SX}:{SX+3}], s{sSo} offen lds')
        a(f's_add_u32 m0, s{sM0+1}, {slot*32768}')
        a(f's_mov_b32 s{sSo}, {196608*c}')
        a(f'buffer_load_dwordx4 v{vWo}, s[{SW}:{SW+3}], s{sSo} offen lds')
        a(f's_add_u32 m0, s{sM0+2}, {slot*32768}')
        a(f's_mov_b32 s{sSo+1}, {196608*c+12288}')
        a(f'buffer_load_dwordx4 v{vWo}, s[{SW}:{SW+3}], s{sSo+1} offen lds')
        a(f's_add_u32 m0, s{sM0+3}, {slot*32768}')
        a(f's_nop 0')
        a(f'buffer_load_dwordx4 v{vQo}, s[{SW}:{SW+3}], s{sSo} offen lds')
    for c in range(4): dma(c)

    sKV, sTT, sCP = 44, 45, 46
    a(f's_lshr_b32 s{sKV}, s{sWv}, 2')
    a(f's_bfe_u32 s{sTT}, s{sWv}, 0x10001')
    a(f's_and_b32 s{sCP}, s{sWv}, 1')
    vXA = 14
    vWA = 22
    vQA = 24
    a(f'v_and_b32 v{vT0}, 31, v{vL}')
    a(f'v_lshrrev_b32 v{vT1}, 5, v{vL}')
    a(f'v_bfe_u32 v{vT2}, v{vL}, 1, 3')
    a(f'v_xor_b32 v{vT1}, v{vT1}, v{vT2}')
    a(f's_lshl_b32 s6, s{sTT}, 5')
    a(f'v_add_u32 v{vT0}, s6, v{vT0}')
    a(f'v_lshlrev_b32 v{vT0}, 7, v{vT0}')
    for j in range(4):
        a(f'v_xor_b32 v{vT2}, {2*j}, v{vT1}')
        a(f'v_lshl_add_u32 v{vXA+j}, v{vT2}, 4, v{vT0}')
        a(f'v_add_u32 v{vXA+4+j}, 0x10000, v{vXA+j}')
    a(f'v_bfe_u32 v{vT0}, v{vL}, 2, 2')
    a(f'v_lshrrev_b32 v{vT1}, 5, v{vL}')
    a(f'v_lshl_add_u32 v{vT1}, v{vT1}, 3, v{vT0}')
    a(f'v_bfe_u32 v{vT2}, v{vL}, 4, 1')
    a(f'v_lshlrev_b32 v{vT2}, 5, v{vT2}')
    a(f'v_and_b32 v{vT3}, 3, v{vL}')
    a(f'v_lshl_add_u32 v{vT2}, v{vT3}, 3, v{vT2}')
    a(f's_lshl_b32 s6, s{sKV}, 1')
    a(f's_add_u32 s6, s6, s{sCP}')
    a(f'v_xor_b32 v{vT3}, s6, v{vT0}')
    a(f'v_lshl_add_u32 v{vWA}, v{vT3}, 6, v{vT2}')
    a(f'v_lshl_add_u32 v{vWA}, v{vT1}, 8, v{vWA}')
    a(f'v_add_u32 v{vWA}, 8192, v{vWA}')
    a(f'v_add_u32 v{vWA+1}, 0x10000, v{vWA}')
    a(f'v_lshrrev_b32 v{vT3}, 1, v{vT0}')
    a(f'v_xor_b32 v{vT3}, s{sCP}, v{vT3}')
    a(f'v_lshl_add_u32 v{vQA}, v{vT3}, 6, v{vT2}')
    a(f'v_lshl_add_u32 v{vQA}, v{vT1}, 7, v{vQA}')
    a(f'v_add_u32 v{vQA}, 24576, v{vQA}')
    a(f'v_add_u32 v{vQA+1}, 0x10000, v{vQA}')
    vAcc, vQAcc = 32, 48
    vXF, vWF, vQF = 64, 96, 128
    for i in range(32): a(f'v_mov_b32 v{vAcc+i}, 0')

    a(f'v_lshrrev_b32 v{vT0}, 3, v0')
    a(f'v_mul_u32_u24 v{vT0}, 132, v{vT0}')
    a(f'v_and_b32 v{vT1}, 7, v0')
    a(f'v_lshl_add_u32 v{vT0}, v{vT1}, 4, v{vT0}')
    a(f'v_add_u32 v{vT0}, {LDS_UT}, v{vT0}')
    a('s_waitcnt vmcnt(16)')
    for i in range(4): a(f'ds_write_b32 v{vT0}, v{vU+i} offset:{4*i}')

    def gemm(isV):
        global _st2
        import copy
        st2 = copy.copy(st); gemm.st = st2
        nwait = [12, 8, 8, 8, 8, 8, 4, 0]
        for c in range(8):
            slot = c % 4
            hi = slot >= 2
            so = (slot % 2)*32768
            a(f's_waitcnt vmcnt({nwait[c]}) lgkmcnt(0)')
            a('s_barrier')
            if c in (0, 1, 4, 7): st2.mark(a)
            if 1 <= c <= 4: dma(c+3)
            doq = (c % 2 == 1) if isV else (c % 2 == 0)
            nrd = 0
            for j in range(4):
                a(f'ds_read_b128 v[{vXF+4*j}:{vXF+4*j+3}], v{vXA+(4 if hi else 0)+j} offset:{so}')
                for s in range(2):
                    a(f'ds_read_b64_tr_b16 v[{vWF+4*j+2*s}:{vWF+4*j+2*s+1}], v{vWA+(1 if hi else 0)} offset:{so+4096*j+1024*s}')
                if doq:
                    for s in range(2):
                        a(f'ds_read_b64_tr_b16 v[{vQF+4*j+2*s}:{vQF+4*j+2*s+1}], v{vQA+(1 if hi else 0)} offset:{so+2048*j+512*s}')
            per = 5 if doq else 3
            for j in range(4):
                left = per*(3-j)
                a(f's_waitcnt lgkmcnt({min(left,15)})')
                X = f'v[{vXF+4*j}:{vXF+4*j+3}]'; W = f'v[{vWF+4*j}:{vWF+4*j+3}]'; Q = f'v[{vQF+4*j}:{vQF+4*j+3}]'
                A16 = f'v[{vAcc}:{vAcc+15}]'; Q16 = f'v[{vQAcc}:{vQAcc+15}]'
                if isV: a(f'v_mfma_f32_32x32x16_bf16 {A16}, {X}, {W}, {A16}')
                else:   a(f'v_mfma_f32_32x32x16_bf16 {A16}, {W}, {X}, {A16}')
                if doq: a(f'v_mfma_f32_32x32x16_bf16 {Q16}, {Q}, {X}, {Q16}')

    LDS_QX = 0
    def qexchange(isV):
        send = vQAcc + (0 if isV else 8)
        keep = vQAcc + (8 if isV else 0)
        a('s_barrier')
        a(f'v_lshlrev_b32 v{vT0}, 4, v{vL}')
        a(f's_lshl_b32 s6, s{sWv}, 11')
        a(f'v_add_u32 v{vT1}, s6, v{vT0}')
        a(f's_xor_b32 s7, s{sWv}, 4')
        a(f's_lshl_b32 s7, s7, 11')
        a(f'v_add_u32 v{vT2}, s7, v{vT0}')
        a(f'ds_write_b128 v{vT1}, v[{send}:{send+3}]')
        a(f'ds_write_b128 v{vT1}, v[{send+4}:{send+7}] offset:1024')
        a('s_waitcnt lgkmcnt(0)')
        a('s_barrier')
        R = vXF
        a(f'ds_read_b128 v[{R}:{R+3}], v{vT2}')
        a(f'ds_read_b128 v[{R+4}:{R+7}], v{vT2} offset:1024')
        a('s_waitcnt lgkmcnt(0)')
        a(f's_mov_b32 s8, {hex(f32bits(QSCALE))}')
        for i in range(8):
            a(f'v_add_f32 v{R+i}, v{R+i}, v{keep+i}')
            a(f'v_mul_f32 v{R+i}, s8, v{R+i}')
        for i in range(4):
            a(f'v_cvt_pk_bf16_f32 v{R+8+i}, v{R+2*i}, v{R+2*i+1}')
        a(f's_lshl_b32 s6, s{sX}, 2')
        a(f's_lshl_b32 s7, s{sCP}, 1')
        a(f's_add_u32 s6, s6, s7')
        if isV: a(f's_add_u32 s6, s6, 1')
        a(f's_lshl_b32 s6, s6, 5')
        a(f's_add_u32 s6, s6, s{sTB}')
        a(f's_lshl_b32 s6, s6, 1')
        a(f's_add_u32 s6, s6, s{sTT}')
        a(f's_lshl_b32 s6, s6, 10')
        a(f's_add_u32 s6, s6, {WS_Q}')
        a(f'buffer_store_dwordx4 v[{R+8}:{R+11}], v{vT0}, s[{SWS}:{SWS+3}], s6 offen')

    def kvbase():
        a(f's_lshl_b32 s6, s{sX}, 2')
        a(f's_lshl_b32 s7, s{sCP}, 1')
        a(f's_add_u32 s6, s6, s7')
        a(f's_lshl_b32 s6, s6, 1')
        a(f's_add_u32 s6, s6, s{sTT}')
        a(f's_lshl_b32 s10, s6, 16')
        a(f's_lshl_b32 s7, s{sTB}, 11')
        a(f's_add_u32 s10, s10, s7')
        a(f's_lshl_b32 s11, s6, 7')
        a(f's_lshl_b32 s7, s{sTB}, 2')
        a(f's_add_u32 s11, s11, s7')

    vP = 64
    a(f's_cmp_eq_u32 s{sKV}, 1')
    a(f's_cbranch_scc1 {label}_v')
    gemm(False)
    gemm.st.mark(a)
    kvbase()
    for i in range(8): a(f'v_cvt_pk_bf16_f32 v{vP+i}, v{vAcc+2*i}, v{vAcc+2*i+1}')
    a(f'v_lshlrev_b32 v{vT0}, 4, v{vL}')
    a(f'buffer_store_dwordx4 v[{vP}:{vP+3}], v{vT0}, s[{SWS}:{SWS+3}], s10 offen')
    a(f's_add_u32 s6, s10, {2*65536}')
    a(f'buffer_store_dwordx4 v[{vP+4}:{vP+7}], v{vT0}, s[{SWS}:{SWS+3}], s6 offen')
    for h in range(2):
        n = 76+h
        a(f'v_mov_b32 v{n}, 0')
        for i in range(4): a(f'v_dot2_f32_bf16 v{n}, v{vP+4*h+i}, v{vP+4*h+i}, v{n}')
        half_sum(a, f'v{n}', f'v{vT1}')
        wave_max(a, f'v{n}', f'v{vT1}')
    a(f'v_mov_b32 v{vT1}, 0')
    a(f's_add_u32 s6, s11, {WS_KN}')
    a(f's_add_u32 s7, s6, 256')
    a(f's_mov_b64 s[8:9], exec')
    a(f's_mov_b64 exec, 1')
    a(f'buffer_store_dword v76, v{vT1}, s[{SWS}:{SWS+3}], s6 offen')
    a(f'buffer_store_dword v77, v{vT1}, s[{SWS}:{SWS+3}], s7 offen')
    a(f's_mov_b64 exec, s[8:9]')
    qexchange(False)
    a(f's_branch {label}_ut')
    a(f'{label}_v:')
    gemm(True)
    gemm.st.mark(a)
    kvbase()
    for i in range(8): a(f'v_cvt_pk_bf16_f32 v{vP+i}, v{vAcc+2*i}, v{vAcc+2*i+1}')
    a(f'v_bfe_u32 v{vT0}, v{vL}, 4, 1')
    a(f'v_lshlrev_b32 v{vT0}, 17, v{vT0}')
    a(f'v_lshrrev_b32 v{vT1}, 5, v{vL}')
    a(f'v_lshl_add_u32 v{vT0}, v{vT1}, 8, v{vT0}')
    a(f'v_and_b32 v{vT1}, 15, v{vL}')
    a(f'v_lshl_add_u32 v{vT0}, v{vT1}, 4, v{vT0}')
    a(f'buffer_store_dwordx4 v[{vP}:{vP+3}], v{vT0}, s[{SWS}:{SWS+3}], s10 offen offset:1024')
    a(f'buffer_store_dwordx4 v[{vP+4}:{vP+7}], v{vT0}, s[{SWS}:{SWS+3}], s10 offen offset:1536')
    a(f'v_mov_b32 v76, 0')
    for i in range(8): a(f'v_dot2_f32_bf16 v76, v{vP+i}, v{vP+i}, v76')
    wave_max(a, 'v76', f'v{vT1}')
    a(f'v_mov_b32 v{vT1}, 0')
    a(f's_add_u32 s6, s11, {WS_VN}')
    a(f's_add_u32 s7, s6, 256')
    a(f's_mov_b64 s[8:9], exec')
    a(f's_mov_b64 exec, 1')
    a(f'buffer_store_dword v76, v{vT1}, s[{SWS}:{SWS+3}], s6 offen')
    a(f'buffer_store_dword v76, v{vT1}, s[{SWS}:{SWS+3}], s7 offen')
    a(f's_mov_b64 exec, s[8:9]')
    qexchange(True)
    a(f'{label}_ut:')
    a(f'v_and_b32 v{vT0}, 7, v0')
    a(f'v_mul_u32_u24 v{vT0}, {8*132}, v{vT0}')
    a(f'v_lshrrev_b32 v{vT1}, 3, v0')
    a(f'v_lshl_add_u32 v{vT0}, v{vT1}, 1, v{vT0}')
    a(f'v_add_u32 v{vT0}, {LDS_UT}, v{vT0}')
    for e in range(8):
        a(f'ds_read_u16_d16{"_hi" if e%2 else ""} v{vXF+e}, v{vT0} offset:{132*e}')
    a(f's_lshl_b32 s6, s{sX}, 6')
    a(f'v_add_u32 v{vT1}, s6, v{vT1}')
    a(f'v_lshlrev_b32 v{vT1}, 12, v{vT1}')
    a(f'v_and_b32 v{vT2}, 7, v0')
    a(f'v_lshl_add_u32 v{vT1}, v{vT2}, 4, v{vT1}')
    a(f's_lshl_b32 s6, s{sTB}, 7')
    a(f's_add_u32 s6, s6, {WS_UT}')
    a('s_waitcnt lgkmcnt(0)')
    for de in range(4): a(f'v_or_b32 v{vU+de}, v{vXF+2*de}, v{vXF+2*de+1}')
    a(f'buffer_store_dwordx4 v[{vU}:{vU+3}], v{vT1}, s[{SWS}:{SWS+3}], s6 offen')
    st = gemm.st
    st.mark(a)
    if STAMP: a('s_waitcnt vmcnt(0)')
    st.mark(a)
    st.flush(a, SWS, sWv)
    a(f'{label}_end:')
    a('s_endpgm')
    return 160, K1_LDS
```

```python
from common import *
import ssm

vL, vT0, vT1, vT2, vT3 = 1, 2, 3, 4, 5
vKA, vVA = 10, 11
vQ = 12
vK = 20
vV = 36
vS = 68
vP = 100
vO = 116
vM = 148
SKV = 16
SWS = 24
sOff = 30
sMask = 32
LDS_OX = ssm.LOX
K2_LDS = ssm.LDS_END
vCAcc = 152
vCF = 184
vCAa, vCBa = 200, 201

CONV = True

def mf(D, A, B, C): return f'v_mfma_f32_32x32x16_bf16 v[{D}:{D+15}], v[{A}:{A+3}], v[{B}:{B+3}], ' + ('0' if C is None else f'v[{C}:{C+15}]')

def tile_loads(slot):
    k = vK+4*slot; v = vV+8*slot
    return [f'buffer_load_dwordx4 v[{k}:{k+3}], v{vKA}, s[{SKV}:{SKV+3}], s{sOff} offen sc1',
            f's_mov_b64 exec, s[{sMask}:{sMask+1}]',
            f'buffer_load_dwordx4 v[{v}:{v+3}], v{vVA}, s[{SKV}:{SKV+3}], s{sOff} offen sc1',
            f'buffer_load_dwordx4 v[{v+4}:{v+7}], v{vVA}, s[{SKV}:{SKV+3}], s{sOff} offen offset:512 sc1',
            f's_mov_b64 exec, -1',
            f's_add_u32 s{sOff}, s{sOff}, 2048',
            f's_and_b32 s{sOff}, s{sOff}, 0xffff']

def unit_fast(t, q, extra=None):
    u = 2*t+q
    S = vS+16*(u%2); P = vP+8*(u%2)
    Sn = vS+16*((u+1)%2); Pp = vP+8*((u+1)%2)
    tn, qn = (t+(q==1), (q+1)%2)
    tp, qp = (t-(q==0), (q+1)%2)
    qk  = mf(Sn, vK+4*(tn%4), vQ+4*qn, None)
    pv1 = mf(vO+16*qp, vV+8*(tp%4),   Pp,   vO+16*qp)
    pv2 = mf(vO+16*qp, vV+8*(tp%4)+4, Pp+4, vO+16*qp)
    ex = lambda i: f'v_exp_f32 v{S+i}, v{S+i}'
    cv = lambda i: f'v_cvt_pk_bf16_f32 v{P+i}, v{S+2*i}, v{S+2*i+1}'
    cm = ssm.conv_mfmas(vCAcc, vCF)
    x_early, x_mid, x_late = [], [], []
    if CONV:
        if u == 0: x_early = ssm.conv_reads(vCAa, vCBa, vCF, 0)
        if u == 4: x_early = ssm.conv_reads(vCAa, vCBa, vCF, 1) + [f'v_add_u32 v{vCAa}, -64, v{vCAa}', f'v_subrev_u32 v{vCBa}, 80, v{vCBa}']
        if u in (1, 5): x_mid = ['s_waitcnt lgkmcnt(0)', cm[0]]
        if u in (2, 6): x_mid = [cm[1]]
        if u in (3, 7): x_mid = [cm[2]]
    L = []
    L += [ex(0), ex(1)]
    if q == 1: L += ['s_waitcnt vmcnt(3)']
    L += [qk, ex(2), ex(3), cv(0)]
    ld = tile_loads((t+3)%4) if q == 1 else []
    xe = x_early
    L += [ex(4)] + ld[:1] + xe[:2] + [ex(5), cv(1), ex(6)] + ld[1:5] + xe[2:4] + [ex(7), cv(2), pv1, ex(8)] + ld[5:] + xe[4:6] + [ex(9), cv(3), ex(10)] + xe[6:] + [ex(11), cv(4),
          ex(12)] + x_mid + [ex(13), cv(5), pv2, ex(14), ex(15), cv(6), cv(7)]
    return L

def gen_k2(a, label):
    sTB, sX, sWv, sHd, sKH = 3, 4, 5, 6, 7
    a(f's_cmp_ge_u32 s2, 256')
    a(f's_cbranch_scc1 {label}_end')
    st = Stamps(1); st.mark(a)
    a(f's_load_dwordx2 s[42:43], s[0:1], {K_WS}')
    a(f's_load_dwordx4 s[36:39], s[0:1], {K_LA}')
    a(f's_load_dwordx2 s[40:41], s[0:1], {K_CR}')
    a(f's_load_dwordx2 s[44:45], s[0:1], {K_CI}')
    a(f's_load_dwordx4 s[60:63], s[0:1], {K_LDT}')
    a(f's_and_b32 s{sX}, s2, 7')
    a(f's_lshr_b32 s{sTB}, s2, 3')
    a(f'v_lshrrev_b32 v{vT0}, 6, v0')
    a(f'v_and_b32 v{vL}, 63, v0')
    a(f'v_readfirstlane_b32 s{sWv}, v{vT0}')
    a(f's_and_b32 s{sHd}, s{sWv}, 3')
    a(f's_lshr_b32 s{sKH}, s{sWv}, 2')
    a(f'v_lshlrev_b32 v{vKA}, 4, v{vL}')
    a(f'v_lshrrev_b32 v{vT0}, 5, v{vL}')
    a(f'v_lshlrev_b32 v{vT0}, 8, v{vT0}')
    a(f'v_and_b32 v{vT1}, 15, v{vL}')
    a(f'v_lshl_add_u32 v{vVA}, v{vT1}, 4, v{vT0}')
    a(f'v_add_u32 v{vVA}, 1024, v{vVA}')
    a(f's_mov_b32 s{sMask}, 0x0000ffff')
    a(f's_mov_b32 s{sMask+1}, 0x0000ffff')
    a(f's_lshl_b32 s8, s{sX}, 2')
    a(f's_add_u32 s8, s8, s{sHd}')
    a(f's_lshl_b32 s9, s8, 1')
    a(f's_add_u32 s9, s9, s{sKH}')
    a('s_waitcnt lgkmcnt(0)')
    srd(a, SWS, 42, WS_SIZE)
    a(f's_lshl_b32 s10, s9, 16')
    a(f's_add_u32 s{SKV}, s42, s10')
    a(f's_addc_u32 s{SKV+1}, s43, 0')
    a(f's_and_b32 s{SKV+1}, s{SKV+1}, 0xffff')
    a(f's_mov_b32 s{SKV+2}, 0x10000')
    a(f's_mov_b32 s{SKV+3}, 0x20000')
    a(f's_lshl_b32 s{sOff}, s{sTB}, 11')
    a(f's_lshl_b32 s10, s8, 5')
    a(f's_add_u32 s10, s10, s{sTB}')
    a(f's_lshl_b32 s10, s10, 11')
    a(f's_add_u32 s10, s10, {WS_Q}')
    a(f's_lshl_b32 s11, s{sKH}, 10')
    a(f's_add_u32 s12, s10, s11')
    a(f's_xor_b32 s11, s11, 1024')
    a(f's_add_u32 s13, s10, s11')
    a(f'buffer_load_dwordx4 v[{vQ}:{vQ+3}], v{vKA}, s[{SWS}:{SWS+3}], s12 offen sc1')
    a(f'buffer_load_dwordx4 v[{vQ+4}:{vQ+7}], v{vKA}, s[{SWS}:{SWS+3}], s13 offen sc1')
    vB, vI, vU = 152, 160, 172
    ssm.kgen_loads(a, dict(la=36, ai=38, cr=40, ci=44, ldt=60, dsk=62), sX, sTB, sWv, vL, vB)
    ssm.idx_loads(a, label, vI, vT0)
    ssm.u_load(a, SWS, sX, sTB, vU, vT0)
    a(f'v_and_b32 v{vT0}, 27, v{vL}')
    a(f'v_mov_b32 v{vT1}, 0')
    a(f'v_mov_b32 v{vT2}, 0x3f803f80')
    a(f'v_cmp_eq_u32 vcc, 16, v{vT0}')
    a(f'v_cndmask_b32 v{vT1}, v{vT1}, v{vT2}, vcc')
    for i in range(32): a(f'v_mov_b32 v{vV+i}, v{vT1}')
    for s in range(3):
        for l in tile_loads(s): a(l)
    a('s_waitcnt vmcnt(9)')
    ssm.kgen_tables(a, label, sWv, vL, vB, 68)
    a('s_waitcnt lgkmcnt(0)')
    a('s_barrier')
    st.mark(a)
    ssm.kgen_gemm(a, sWv, vL, vB+5, 68, None)
    a('s_waitcnt lgkmcnt(0)')
    a('s_barrier')
    ssm.copies(a, sWv, vI, 68)
    ssm.u_stage(a, sWv, vU, 68)
    ssm.conv_addr(a, sWv, vL, vCAa, vCBa, vT0)
    a('s_waitcnt lgkmcnt(0)')
    a('s_barrier')
    for i in range(32): a(f'v_mov_b32 v{vCAcc+i}, 0')
    for i in range(32): a(f'v_mov_b32 v{vO+i}, 0')
    for i in range(8): a(f'v_mov_b32 v{vP+8+i}, 0')
    a(f'v_mov_b32 v{vM}, 0')
    a(f'v_mov_b32 v{vM+1}, 0')
    a('s_waitcnt vmcnt(6)')
    a(mf(vS, vK, vQ, None))
    st.mark(a)
    a('s_nop 15')
    a('s_mov_b32 s34, 8')
    a('.p2align 6')
    a(f'{label}_loop:')
    for t in range(4):
        for q in range(2):
            for l in unit_fast(t, q): a(l)
    a('s_sub_u32 s34, s34, 1')
    a('s_cmp_lg_u32 s34, 0')
    a(f's_cbranch_scc1 {label}_loop')
    st.mark(a)
    a(mf(vO+16, vV+24, vP+8, vO+16))
    a(mf(vO+16, vV+28, vP+12, vO+16))
    a('s_waitcnt vmcnt(0)')
    a(f'v_lshlrev_b32 v{vT0}, 4, v{vL}')
    a(f's_mul_i32 s10, s{sWv}, 3072')
    a(f's_add_u32 s10, s10, {LDS_OX}')
    a(f'v_add_u32 v{vT1}, s10, v{vT0}')
    a(f's_xor_b32 s11, s{sWv}, 4')
    a(f's_mul_i32 s11, s11, 3072')
    a(f's_add_u32 s11, s11, {LDS_OX}')
    a(f'v_add_u32 v{vT2}, s11, v{vT0}')
    X = vS
    a(f'v_mov_b32 v{X}, v{vO+16+8}')
    a(f'v_mov_b32 v{X+1}, v{vM+1}')
    a(f'ds_write_b128 v{vT1}, v[{vO+16}:{vO+19}] offset:0')
    a(f'ds_write_b128 v{vT1}, v[{vO+20}:{vO+23}] offset:1024')
    a(f'ds_write_b64 v{vT1}, v[{X}:{X+1}] offset:2048')
    a('s_waitcnt lgkmcnt(0)')
    a('s_barrier')
    a(f'v_lshlrev_b32 v{vT3}, 3, v{vL}')
    R = vS+4
    a(f'ds_read_b128 v[{R}:{R+3}], v{vT2} offset:0')
    a(f'ds_read_b128 v[{R+4}:{R+7}], v{vT2} offset:1024')
    a(f'ds_read_b64 v[{R+8}:{R+9}], v{vT2} offset:2048')
    a('s_waitcnt lgkmcnt(0)')
    ma, mb, fa, fb = vM, R+9, vT1, vT2
    a(f'v_max_f32 v{vT3}, v{ma}, v{mb}')
    a(f'v_sub_f32 v{fa}, v{ma}, v{vT3}')
    a(f'v_sub_f32 v{fb}, v{mb}, v{vT3}')
    a(f'v_exp_f32 v{fa}, v{fa}')
    a(f'v_exp_f32 v{fb}, v{fb}')
    a(f'v_mul_f32 v{vT3}, v{fa}, v{vO+8}')
    a(f'v_fmac_f32 v{vT3}, v{fb}, v{R+8}')
    a(f'v_rcp_f32 v{vT3}, v{vT3}')
    a(f'v_mul_f32 v{fa}, v{fa}, v{vT3}')
    a(f'v_mul_f32 v{fb}, v{fb}, v{vT3}')
    for i in range(8):
        a(f'v_mul_f32 v{vO+i}, v{fa}, v{vO+i}')
        a(f'v_fmac_f32 v{vO+i}, v{fb}, v{R+i}')
    for i in range(4): a(f'v_cvt_pk_bf16_f32 v{vP+i}, v{vO+2*i}, v{vO+2*i+1}')
    a(f's_lshl_b32 s10, s{sTB}, 1')
    a(f's_add_u32 s10, s10, s{sKH}')
    a(f's_lshl_b32 s10, s10, 5')
    a(f's_add_u32 s10, s10, s8')
    a(f's_lshl_b32 s10, s10, 10')
    a(f's_add_u32 s10, s10, {WS_O}')
    a(f'buffer_store_dwordx4 v[{vP}:{vP+3}], v{vKA}, s[{SWS}:{SWS+3}], s10 offen')
    st.mark(a)
    ssm.conv_finish(a, SWS, sX, sTB, sWv, vL, vCAcc, vT0)
    if STAMP: a('s_waitcnt vmcnt(0)')
    st.mark(a)
    st.flush(a, SWS, sWv)
    a(f'{label}_end:')
    a('s_endpgm')
    for l in ssm.idx_data(label): a(l)
    return 208, K2_LDS
```

```python
from common import *

LDS_OF = 131072
K3_LDS = 163840

def mf(D, A, B, C): return f'v_mfma_f32_32x32x16_bf16 v[{D}:{D+15}], v[{A}:{A+3}], v[{B}:{B+3}], ' + ('0' if C is None else f'v[{C}:{C+15}]')

def gen_k3(a, label):
    sTB, sX, sWv, sCT, sKQ, sT, sCG = 3, 4, 5, 6, 7, 8, 9
    vL, vT0, vT1, vT2, vT3 = 1, 2, 3, 4, 5
    SWO, SWS, SOUT = 12, 16, 20
    a(f's_cmp_ge_u32 s2, 256')
    a(f's_cbranch_scc1 {label}_end')
    st = Stamps(2); st.mark(a)
    a(f's_load_dwordx2 s[36:37], s[0:1], {K_WO}')
    a(f's_load_dwordx2 s[38:39], s[0:1], {K_OUT}')
    a(f's_load_dwordx2 s[42:43], s[0:1], {K_WS}')
    a(f's_and_b32 s{sX}, s2, 7')
    a(f's_lshr_b32 s{sTB}, s2, 3')
    a(f'v_lshrrev_b32 v{vT0}, 6, v0')
    a(f'v_and_b32 v{vL}, 63, v0')
    a(f'v_readfirstlane_b32 s{sWv}, v{vT0}')
    a(f's_and_b32 s{sCT}, s{sWv}, 3')
    a(f's_lshr_b32 s{sKQ}, s{sWv}, 2')
    a(f's_lshl_b32 s{sT}, s{sTB}, 1')
    a(f's_and_b32 s10, s{sX}, 1')
    a(f's_add_u32 s{sT}, s{sT}, s10')
    a(f's_lshr_b32 s{sCG}, s{sX}, 1')
    vWo, vOo, vYo = 6, 7, 8
    a(f'v_lshrrev_b32 v{vT0}, 4, v{vL}')
    a(f's_lshl_b32 s10, s{sWv}, 6')
    a(f'v_add_u32 v{vT1}, s10, v{vT0}')
    a(f'v_lshlrev_b32 v{vWo}, 10, v{vT1}')
    a(f'v_bfe_u32 v{vT1}, v{vL}, 2, 2')
    a(f'v_xor_b32 v{vT1}, v{vT1}, v{vT0}')
    a(f'v_lshl_add_u32 v{vWo}, v{vT1}, 6, v{vWo}')
    a(f'v_and_b32 v{vT1}, 3, v{vL}')
    a(f'v_lshl_add_u32 v{vWo}, v{vT1}, 4, v{vWo}')
    a(f's_lshl_b32 s10, s{sCG}, 8')
    a(f'v_add_u32 v{vWo}, s10, v{vWo}')
    a(f'v_lshlrev_b32 v{vOo}, 4, v{vL}')
    a(f'v_lshrrev_b32 v{vT0}, 3, v0')
    a(f's_lshl_b32 s10, s{sX}, 6')
    a(f'v_add_u32 v{vT0}, s10, v{vT0}')
    a(f'v_lshlrev_b32 v{vYo}, 12, v{vT0}')
    a(f'v_and_b32 v{vT0}, 7, v0')
    a(f'v_lshl_add_u32 v{vYo}, v{vT0}, 4, v{vYo}')
    a('s_waitcnt lgkmcnt(0)')
    srd(a, SWO, 36, 512*1024)
    srd(a, SOUT, 38, 2048*2048)
    srd(a, SWS, 42, WS_SIZE)
    vY = 10
    a(f's_lshl_b32 s10, s{sTB}, 7')
    a(f's_add_u32 s10, s10, {WS_YT}')
    a(f'buffer_load_dwordx4 v[{vY}:{vY+3}], v{vYo}, s[{SWS}:{SWS+3}], s10 offen sc1')
    a(f's_lshl_b32 s10, s{sT}, 15')
    a(f's_add_u32 s10, s10, {WS_O}')
    a(f's_lshl_b32 s11, s{sWv}, 12')
    a(f's_add_u32 s10, s10, s11')
    a(f's_add_u32 s11, s11, {LDS_OF}')
    for i in range(4):
        a(f's_add_u32 m0, s11, {1024*i}')
        a(f's_add_u32 s24, s10, {1024*i}')
        a(f'buffer_load_dwordx4 v{vOo}, s[{SWS}:{SWS+3}], s24 offen sc1 lds')
    a(f's_lshl_b32 s11, s{sWv}, 14')
    for i in range(16):
        a(f's_add_u32 m0, s11, {1024*i}')
        a(f's_movk_i32 s24, {4096*i}' if 4096*i < 32768 else f's_mov_b32 s24, {4096*i}')
        a(f'buffer_load_dwordx4 v{vWo}, s[{SWO}:{SWO+3}], s24 offen lds')
    vWA, vOA = 14, 15
    a(f'v_bfe_u32 v{vT0}, v{vL}, 2, 2')
    a(f'v_lshrrev_b32 v{vT1}, 5, v{vL}')
    a(f'v_lshl_add_u32 v{vT1}, v{vT1}, 2, v{vT0}')
    a(f'v_xor_b32 v{vT3}, s{sCT}, v{vT0}')
    a(f'v_lshlrev_b32 v{vWA}, 6, v{vT3}')
    a(f'v_lshl_add_u32 v{vWA}, v{vT1}, 8, v{vWA}')
    a(f'v_bfe_u32 v{vT2}, v{vL}, 4, 1')
    a(f'v_lshl_add_u32 v{vWA}, v{vT2}, 5, v{vWA}')
    a(f'v_and_b32 v{vT2}, 3, v{vL}')
    a(f'v_lshl_add_u32 v{vWA}, v{vT2}, 3, v{vWA}')
    a(f's_lshl_b32 s10, s{sKQ}, 16')
    a(f'v_add_u32 v{vWA}, s10, v{vWA}')
    a(f's_lshl_b32 s10, s{sKQ}, 14')
    a(f's_add_u32 s10, s10, {LDS_OF}')
    a(f'v_lshlrev_b32 v{vOA}, 4, v{vL}')
    a(f'v_add_u32 v{vOA}, s10, v{vOA}')
    vAcc = 16; vF = 32
    a('s_waitcnt vmcnt(0)')
    a('s_barrier')
    st.mark(a)
    def rd(h):
        b = vF + 8*(h%4)
        a(f'ds_read_b64_tr_b16 v[{b}:{b+1}], v{vWA} offset:{4096*h}')
        a(f'ds_read_b64_tr_b16 v[{b+2}:{b+3}], v{vWA} offset:{4096*h+2048}')
        a(f'ds_read_b128 v[{b+4}:{b+7}], v{vOA} offset:{1024*h}')
    for h in range(3): rd(h)
    for h in range(16):
        if h+3 < 16: rd(h+3)
        a(f's_waitcnt lgkmcnt({3*min(3,15-h)})')
        b = vF + 8*(h%4)
        a(mf(vAcc, b, b+4, None if h == 0 else vAcc))
    st.mark(a)
    a('s_barrier')
    a(f'v_lshlrev_b32 v{vT0}, 4, v{vL}')
    a(f's_lshl_b32 s10, s{sWv}, 11')
    a(f'v_add_u32 v{vT1}, s10, v{vT0}')
    a(f's_xor_b32 s11, s{sWv}, 4')
    a(f's_lshl_b32 s11, s11, 11')
    a(f'v_add_u32 v{vT2}, s11, v{vT0}')
    R = 32
    a(f's_cmp_eq_u32 s{sKQ}, 1')
    a(f's_cbranch_scc1 {label}_kq1')
    a(f'ds_write_b128 v{vT1}, v[{vAcc+8}:{vAcc+11}]')
    a(f'ds_write_b128 v{vT1}, v[{vAcc+12}:{vAcc+15}] offset:1024')
    for i in range(8): a(f'v_mov_b32 v{R+8+i}, v{vAcc+i}')
    a(f's_branch {label}_kqj')
    a(f'{label}_kq1:')
    a(f'ds_write_b128 v{vT1}, v[{vAcc}:{vAcc+3}]')
    a(f'ds_write_b128 v{vT1}, v[{vAcc+4}:{vAcc+7}] offset:1024')
    for i in range(8): a(f'v_mov_b32 v{R+8+i}, v{vAcc+8+i}')
    a(f'{label}_kqj:')
    a('s_waitcnt lgkmcnt(0)')
    a('s_barrier')
    a(f'ds_read_b128 v[{R}:{R+3}], v{vT2}')
    a(f'ds_read_b128 v[{R+4}:{R+7}], v{vT2} offset:1024')
    a('s_waitcnt lgkmcnt(0)')
    for i in range(8): a(f'v_add_f32 v{R+i}, v{R+i}, v{R+8+i}')
    Q = 48
    for i in range(4): a(f'v_cvt_pk_bf16_f32 v{Q+i}, v{R+2*i}, v{R+2*i+1}')
    a(f'v_permlane32_swap_b32 v{Q}, v{Q+2}')
    a(f'v_permlane32_swap_b32 v{Q+1}, v{Q+3}')
    a(f'v_and_b32 v{vT0}, 31, v{vL}')
    a(f'v_lshlrev_b32 v{vT0}, 11, v{vT0}')
    a(f'v_lshrrev_b32 v{vT1}, 5, v{vL}')
    a(f'v_lshl_add_u32 v{vT0}, v{vT1}, 4, v{vT0}')
    a(f's_lshl_b32 s10, s{sT}, 16')
    a(f's_lshl_b32 s11, s{sCG}, 8')
    a(f's_add_u32 s10, s10, s11')
    a(f's_lshl_b32 s11, s{sCT}, 6')
    a(f's_add_u32 s10, s10, s11')
    a(f's_lshl_b32 s11, s{sKQ}, 5')
    a(f's_add_u32 s10, s10, s11')
    a(f'buffer_store_dwordx4 v[{Q}:{Q+3}], v{vT0}, s[{SOUT}:{SOUT+3}], s10 offen')
    YB = 32768
    a(f'v_lshrrev_b32 v{vT0}, 3, v0')
    a(f'v_mul_u32_u24 v{vT0}, 132, v{vT0}')
    a(f'v_and_b32 v{vT1}, 7, v0')
    a(f'v_lshl_add_u32 v{vT0}, v{vT1}, 4, v{vT0}')
    for i in range(4): a(f'ds_write_b32 v{vT0}, v{vY+i} offset:{YB+4*i}')
    a('s_waitcnt lgkmcnt(0)')
    a('s_barrier')
    a(f'v_and_b32 v{vT0}, 7, v0')
    a(f'v_mul_u32_u24 v{vT0}, {8*132}, v{vT0}')
    a(f'v_lshrrev_b32 v{vT1}, 3, v0')
    a(f'v_lshl_add_u32 v{vT0}, v{vT1}, 1, v{vT0}')
    for e in range(8):
        a(f'ds_read_u16_d16{"_hi" if e%2 else ""} v{32+e}, v{vT0} offset:{YB+132*e}')
    a(f's_lshl_b32 s10, s{sTB}, 6')
    a(f'v_add_u32 v{vT1}, s10, v{vT1}')
    a(f'v_lshlrev_b32 v{vT1}, 11, v{vT1}')
    a(f'v_and_b32 v{vT2}, 7, v0')
    a(f'v_lshl_add_u32 v{vT1}, v{vT2}, 4, v{vT1}')
    a(f's_lshl_b32 s10, s{sX}, 7')
    a(f's_add_u32 s10, s10, 1024')
    a('s_waitcnt lgkmcnt(0)')
    for de in range(4): a(f'v_or_b32 v{vY+de}, v{32+2*de}, v{32+2*de+1}')
    a(f'buffer_store_dwordx4 v[{vY}:{vY+3}], v{vT1}, s[{SOUT}:{SOUT+3}], s10 offen')
    st.mark(a)
    if STAMP: a('s_waitcnt vmcnt(0)')
    st.mark(a)
    st.flush(a, SWS, sWv)
    a(f'{label}_end:')
    a('s_endpgm')
    return 64, K3_LDS
```

```python
from common import *
import struct, math

LK  = 0
LZ  = 4352
LW  = LZ + 2*16896
LRX = LZ
LC  = 72192
LU  = LC + 33280
LOX = LU + 15360
LY  = LOX + 24576
LDS_END = LY + 8192

def f32(x): return hex(struct.unpack('<I', struct.pack('<f', x))[0])

def bf16_round_int(l):
    if l < 256: return l
    s = l.bit_length() - 8
    q, r = l >> s, l & ((1 << s) - 1)
    half = 1 << (s-1)
    if r > half or (r == half and (q & 1)): q += 1
    return q << s

def ktab_off(l):
    if l < 0 or l > 2047: return 2048
    p = bf16_round_int(l)
    if p < 256: i, j = p & 7, p >> 3
    elif p < 512: r = p-256; i, j = 8 + ((r & 7) >> 1), r >> 3
    elif p < 1024: r = p-512; i, j = 12 + 2*(r >> 8) + ((r & 7) >> 2), (r & 255) >> 3
    elif p < 2048: r = p-1024; i, j = 16 + (r >> 8), (r & 255) >> 3
    else: i, j = 20, 0
    return i*64 + j*2

def index_table():
    out = []
    for mu in range(260):
        for e in range(12):
            m = 8*mu - 4 + e
            out.append(ktab_off(2048 - m) if m >= 1 else 2048)
    return out

def cmul(a, D, X, Y, T):
    a(f'v_pk_mul_f32 v[{T}:{T+1}], v[{X}:{X+1}], v[{Y}:{Y+1}] op_sel:[0,0] op_sel_hi:[0,1]')
    a(f'v_pk_fma_f32 v[{D}:{D+1}], v[{X}:{X+1}], v[{Y}:{Y+1}], v[{T}:{T+1}] op_sel:[1,1,0] op_sel_hi:[1,0,1] neg_lo:[0,1,0]')

def direct(a, D, p, vAl, vBe, t0, t1):
    a(f'v_mul_f32 v{t0}, {f32(float(p))}, v{vAl}')
    a(f'v_mul_f32 v{t1}, {f32(float(p))}, v{vBe}')
    a(f'v_exp_f32 v{t0}, v{t0}')
    a(f'v_fract_f32 v{t1}, v{t1}')
    a(f'v_cos_f32 v{D}, v{t1}')
    a(f'v_sin_f32 v{D+1}, v{t1}')
    a(f'v_mul_f32 v{D}, v{D}, v{t0}')
    a(f'v_mul_f32 v{D+1}, v{D+1}, v{t0}')

def bf16r(a, v):
    a(f'v_cvt_pk_bf16_f32 v{v}, v{v}, v{v}')
    a(f'v_lshlrev_b32 v{v}, 16, v{v}')

def kgen_loads(a, S, sX, sTB, sWv, vL, B):
    a(f's_lshl_b32 s50, s{sX}, 6')
    a(f's_lshl_b32 s51, s{sTB}, 1')
    a(f's_add_u32 s50, s50, s51')
    a(f's_and_b32 s51, s{sWv}, 1')
    a(f's_add_u32 s51, s50, s51')
    a(f's_lshl_b32 s52, s51, 8')
    a(f's_bfe_u32 s53, s{sWv}, 0x10001')
    a(f's_lshl_b32 s53, s53, 7')
    a(f's_add_u32 s52, s52, s53')
    a(f's_lshl_b32 s53, s51, 1')
    a(f'v_lshl_add_u32 v{B+6}, v{vL}, 1, s52')
    a(f'v_mov_b32 v{B+7}, s53')
    for i, k in enumerate(('la','ai','cr','ci')):
        a(f'global_load_ushort v{B+i}, v{B+6}, s[{S[k]}:{S[k]+1}]')
    a(f'global_load_ushort v{B+4}, v{B+7}, s[{S["ldt"]}:{S["ldt"]+1}]')
    a(f'global_load_ushort v{B+5}, v{B+7}, s[{S["dsk"]}:{S["dsk"]+1}]')

def kgen_tables(a, label, sWv, vL, B, T):
    la, ai, cr, ci, ldt = B, B+1, B+2, B+3, B+4
    LOG2E = 1.4426950408889634
    for r in (la, ai, cr, ci, ldt): a(f'v_lshlrev_b32 v{r}, 16, v{r}')
    a(f'v_mul_f32 v{ldt}, {f32(LOG2E)}, v{ldt}')
    a(f'v_mul_f32 v{la}, {f32(LOG2E)}, v{la}')
    a(f'v_exp_f32 v{ldt}, v{ldt}')
    a(f'v_exp_f32 v{la}, v{la}')
    bf16r(a, ldt); bf16r(a, la)
    al, be = T, T+1
    a(f'v_mul_f32 v{al}, v{la}, v{ldt}')
    a(f'v_mul_f32 v{al}, {f32(-LOG2E)}, v{al}')
    a(f'v_mul_f32 v{be}, v{ai}, v{ldt}')
    a(f'v_mul_f32 v{be}, {f32(1/(2*math.pi))}, v{be}')
    ad = T+2
    a(f's_and_b32 s54, s{sWv}, 1')
    a(f's_mul_i32 s54, s54, 16896')
    a(f's_bfe_u32 s55, s{sWv}, 0x10001')
    a(f's_lshl_b32 s55, s55, 8')
    a(f's_add_u32 s54, s54, s55')
    a(f'v_lshl_add_u32 v{ad}, v{vL}, 2, s54')
    t0, t1, pk = T+3, T+4, T+5
    Z, Z8, TT, Z1, Z2, Z4, Z256, Z512, Z1024, W, W2 = T+6, T+8, T+10, T+12, T+14, T+16, T+18, T+20, T+22, T+24, T+26
    a(f's_cmp_ge_u32 s{sWv}, 4')
    a(f's_cbranch_scc1 {label}_hi')
    direct(a, Z8, 8, al, be, t0, t1)
    a(f'v_mov_b32 v{pk}, 0x3f80')
    a(f'ds_write_b32 v{ad}, v{pk} offset:{LZ}')
    a(f'v_cvt_pk_bf16_f32 v{pk}, v{Z8}, v{Z8+1}')
    a(f'ds_write_b32 v{ad}, v{pk} offset:{LZ+528}')
    cur = Z8
    for j in range(2, 32):
        nxt = Z if cur != Z else W
        cmul(a, nxt, cur, Z8, TT)
        p = pk if j % 2 else t0
        a(f'v_cvt_pk_bf16_f32 v{p}, v{nxt}, v{nxt+1}')
        a(f'ds_write_b32 v{ad}, v{p} offset:{LZ+528*j}')
        cur = nxt
    a(f's_branch {label}_tj')
    a(f'{label}_hi:')
    a(f'v_add_u32 v{ad}, {LW}, v{ad}')
    direct(a, Z1, 1, al, be, t0, t1)
    direct(a, Z256, 256, al, be, t0, t1)
    direct(a, Z512, 512, al, be, t0, t1)
    direct(a, Z1024, 1024, al, be, t0, t1)
    cmul(a, Z2, Z1, Z1, TT)
    cmul(a, Z4, Z2, Z2, TT)
    W0 = Z8
    a(f'v_mul_f32 v{W0}, v{cr}, v{ldt}')
    a(f'v_mul_f32 v{W0+1}, v{ci}, v{ldt}')
    a(f'v_add_f32 v{W0}, v{W0}, v{W0}')
    a(f'v_add_f32 v{W0+1}, v{W0+1}, v{W0+1}')
    cnt = [0]
    def put(i, r):
        p = pk if cnt[0] % 2 else t0
        cnt[0] += 1
        a(f'v_cvt_pk_bf16_f32 v{p}, v{r}, -v{r+1}')
        a(f'ds_write_b32 v{ad}, v{p} offset:{528*i}')
    put(0, W0)
    def chain(i0, start, seq):
        cur = start; i = i0
        for f in seq:
            nxt = W if cur != W else W2
            cmul(a, nxt, cur, f, TT)
            put(i, nxt); cur = nxt; i += 1
        return cur
    chain(1, W0, [Z1]*7)
    chain(8, W0, [Z256, Z2, Z2, Z2])
    cur = chain(12, W0, [Z512])
    cmul(a, Z, cur, Z4, TT); put(13, Z)
    cur = chain(14, cur, [Z256])
    cmul(a, Z, cur, Z4, TT); put(15, Z)
    chain(16, W0, [Z1024, Z256, Z256, Z256, Z256])
    a(f'{label}_tj:')

def kgen_gemm(a, sWv, vL, vDs, T, sDsOn):
    a(f's_and_b32 s54, s{sWv}, 1')
    a(f's_mul_i32 s55, s54, 16896')
    a(f's_bfe_u32 s56, s{sWv}, 0x10001')
    a(f's_lshr_b32 s57, s{sWv}, 2')
    aA, aB, t = T, T+1, T+2
    a(f'v_and_b32 v{t}, 15, v{vL}')
    a(f'v_mul_u32_u24 v{t}, 528, v{t}')
    a(f'v_lshrrev_b32 v{t+1}, 4, v{vL}')
    a(f'v_lshl_add_u32 v{t}, v{t+1}, 4, v{t}')
    a(f's_mul_i32 s58, s56, {16*528}')
    a(f's_add_u32 s58, s58, s55')
    a(f's_add_u32 s58, s58, {LW}')
    a(f'v_add_u32 v{aA}, s58, v{t}')
    a(f's_mul_i32 s58, s57, {16*528}')
    a(f's_add_u32 s58, s58, s55')
    a(f's_add_u32 s58, s58, {LZ}')
    a(f'v_add_u32 v{aB}, s58, v{t}')
    F = T+4
    for s in range(8):
        a(f'ds_read_b128 v[{F+8*s}:{F+8*s+3}], v{aA} offset:{64*s}')
        if s == 7: pass
    for s in range(8):
        a(f'ds_read_b128 v[{F+8*s+4}:{F+8*s+7}], v{aB} offset:{64*s}')
    D = F + 64
    for s in range(8):
        a(f's_waitcnt lgkmcnt({7-s})')
        a(f'v_mfma_f32_16x16x32_bf16 v[{D}:{D+3}], v[{F+8*s}:{F+8*s+3}], v[{F+8*s+4}:{F+8*s+7}], ' + ('0' if s == 0 else f'v[{D}:{D+3}]'))
    a(f's_or_b32 s58, s56, s57')
    a(f's_cmp_eq_u32 s58, 0')
    a(f's_cselect_b32 s58, 1, 0')
    a(f'v_lshlrev_b32 v{vDs}, 16, v{vDs}')
    a(f'v_cmp_gt_u32 vcc, s58, v{vL}')
    a(f'v_cndmask_b32 v{vDs}, 0, v{vDs}, vcc')
    a(f'v_lshrrev_b32 v{t}, 4, v{vL}')
    a(f'v_lshlrev_b32 v{t}, 8, v{t}')
    a(f'v_and_b32 v{t+1}, 15, v{vL}')
    a(f'v_lshl_add_u32 v{t}, v{t+1}, 1, v{t}')
    a(f's_mul_i32 s58, s54, 2112')
    a(f's_lshl_b32 s59, s56, 10')
    a(f's_add_u32 s58, s58, s59')
    a(f's_lshl_b32 s59, s57, 5')
    a(f's_add_u32 s58, s58, s59')
    a(f'v_add_u32 v{t}, s58, v{t}')
    a(f'v_add_f32 v{D}, v{D}, v{vDs}')
    for r in range(4):
        a(f'v_cvt_pk_bf16_f32 v{F+r}, v{D+r}, v{D+r}')
    for r in range(4):
        a(f'ds_write_b16 v{t}, v{F+r} offset:{LK+64*r}')
    a(f'v_mov_b32 v{t+1}, 0')
    a(f'v_mov_b32 v{t}, 0')
    a(f'ds_write_b32 v{t}, v{t+1} offset:{LK+2048}')
    a(f'ds_write_b32 v{t}, v{t+1} offset:{LK+2112+2048}')

def idx_loads(a, label, I, T):
    a(f's_getpc_b64 s[56:57]')
    a(f'{label}_pc:')
    a(f's_add_u32 s56, s56, {label}_idx-{label}_pc')
    a(f's_addc_u32 s57, s57, 0')
    a(f'v_and_b32 v{T}, 255, v0')
    a(f'v_mul_u32_u24 v{T}, 24, v{T}')
    a(f'global_load_dwordx2 v[{I}:{I+1}], v{T}, s[56:57]')
    a(f'global_load_dwordx2 v[{I+2}:{I+3}], v{T}, s[56:57] offset:8')
    a(f'global_load_dwordx2 v[{I+4}:{I+5}], v{T}, s[56:57] offset:16')
    a(f'v_and_b32 v{T}, 3, v0')
    a(f'v_mul_u32_u24 v{T}, 24, v{T}')
    a(f'v_add_u32 v{T}, {256*24}, v{T}')
    a(f'global_load_dwordx2 v[{I+6}:{I+7}], v{T}, s[56:57]')
    a(f'global_load_dwordx2 v[{I+8}:{I+9}], v{T}, s[56:57] offset:8')
    a(f'global_load_dwordx2 v[{I+10}:{I+11}], v{T}, s[56:57] offset:16')

def idx_data(label):
    t = index_table()
    L = [f'.p2align 4', f'{label}_idx:']
    for i in range(0, len(t), 12):
        L.append('.short ' + ', '.join(str(x) for x in t[i:i+12]))
    return L

def copies(a, sWv, I, T):
    a(f's_lshr_b32 s54, s{sWv}, 2')
    a(f's_mul_i32 s55, s54, {2112 * 0x10001}')
    a(f's_mul_i32 s56, s54, 16640')
    A = T
    Wb = T+12
    Sb = T+18
    ad = T+24
    for rnd in range(2):
        Ix = I + 6*rnd
        if rnd == 1:
            a(f'v_and_b32 v{ad}, 255, v0')
            a(f'v_cmp_gt_u32 vcc, 4, v{ad}')
            a(f's_and_saveexec_b64 s[58:59], vcc')
        for d in range(6):
            a(f'v_add_u32 v{Ix+d}, s55, v{Ix+d}')
            a(f'v_and_b32 v{A+2*d}, 0xffff, v{Ix+d}')
            a(f'v_lshrrev_b32 v{A+2*d+1}, 16, v{Ix+d}')
        for e in range(12):
            a(f'ds_read_u16_d16{"_hi" if e%2 else ""} v{A+e}, v{A+e} offset:{LK}')
        if rnd == 0:
            a(f'v_and_b32 v{ad}, 255, v0')
            a(f'v_lshlrev_b32 v{ad}, 4, v{ad}')
        else:
            a(f'v_and_b32 v{ad}, 3, v0')
            a(f'v_lshlrev_b32 v{ad}, 4, v{ad}')
            a(f'v_add_u32 v{ad}, 4096, v{ad}')
        a(f'v_add_u32 v{ad}, s56, v{ad}')
        a(f'v_add_u32 v{ad}, {LC}, v{ad}')
        a('s_waitcnt lgkmcnt(0)')
        for d in range(6): a(f'v_or_b32 v{Wb+d}, v{A+2*d}, v{A+2*d+1}')
        for k in range(5): a(f'v_alignbit_b32 v{Sb+k}, v{Wb+k+1}, v{Wb+k}, 16')
        a(f'ds_write_b128 v{ad}, v[{Wb+2}:{Wb+5}]')
        a(f'ds_write_b128 v{ad}, v[{Sb}:{Sb+3}] offset:{3*4160}')
        a(f'v_add_u32 v{ad+1}, 4160, v{ad}')
        a(f'ds_write2_b32 v{ad+1}, v{Sb+1}, v{Sb+2} offset0:0 offset1:1')
        a(f'ds_write2_b32 v{ad+1}, v{Sb+3}, v{Sb+4} offset0:2 offset1:3')
        a(f'v_add_u32 v{ad+1}, 8320, v{ad}')
        a(f'ds_write2_b32 v{ad+1}, v{Wb+1}, v{Wb+2} offset0:0 offset1:1')
        a(f'ds_write2_b32 v{ad+1}, v{Wb+3}, v{Wb+4} offset0:2 offset1:3')
        if rnd == 1:
            a(f's_mov_b64 exec, s[58:59]')

def u_load(a, SWS, sX, sTB, U, T):
    a(f's_lshl_b32 s54, s{sX}, 6')
    a(f's_lshl_b32 s55, s{sTB}, 1')
    a(f's_add_u32 s54, s54, s55')
    a(f's_lshl_b32 s54, s54, 12')
    a(f's_add_u32 s54, s54, {WS_UT}')
    a(f'v_lshlrev_b32 v{T}, 4, v0')
    a(f'buffer_load_dwordx4 v[{U}:{U+3}], v{T}, s[{SWS}:{SWS+3}], s54 offen sc1')

def u_stage(a, sWv, U, T):
    a(f's_lshr_b32 s54, s{sWv}, 2')
    a(f's_mul_i32 s54, s54, 7680')
    a(f's_add_u32 s54, s54, {LU}')
    a(f'v_and_b32 v{T}, 255, v0')
    a(f'v_lshrrev_b32 v{T+1}, 2, v{T}')
    a(f'v_mul_u32_u24 v{T+1}, 80, v{T+1}')
    a(f'v_and_b32 v{T+2}, 3, v0')
    a(f'v_lshl_add_u32 v{T+1}, v{T+2}, 4, v{T+1}')
    a(f'v_add_u32 v{T+1}, s54, v{T+1}')
    a(f'ds_write_b128 v{T+1}, v[{U}:{U+3}] offset:2560')
    a(f'v_lshlrev_b32 v{T+1}, 4, v{T}')
    a(f'v_add_u32 v{T+1}, s54, v{T+1}')
    for i in range(4): a(f'v_mov_b32 v{T+4+i}, 0')
    a(f'v_cmp_gt_u32 vcc, 160, v{T}')
    a(f's_and_saveexec_b64 s[58:59], vcc')
    a(f'ds_write_b128 v{T+1}, v[{T+4}:{T+7}]')
    a(f's_mov_b64 exec, s[58:59]')

def conv_addr(a, sWv, vL, vCAa, vCBa, T):
    a(f's_lshr_b32 s54, s{sWv}, 2')
    a(f's_and_b32 s55, s{sWv}, 3')
    a(f's_mul_i32 s56, s54, 16640')
    a(f's_lshl_b32 s57, s55, 9')
    a(f's_sub_u32 s56, s56, s57')
    a(f's_add_u32 s56, s56, {LC + 4096 - 2048}')
    a(f'v_and_b32 v{T}, 3, v{vL}')
    a(f'v_mul_u32_u24 v{vCAa}, 4160, v{T}')
    a(f'v_lshrrev_b32 v{T}, 5, v{vL}')
    a(f'v_lshl_add_u32 v{vCAa}, v{T}, 4, v{vCAa}')
    a(f'v_bfe_u32 v{T}, v{vL}, 2, 3')
    a(f'v_lshlrev_b32 v{T}, 3, v{T}')
    a(f'v_sub_u32 v{vCAa}, v{vCAa}, v{T}')
    a(f'v_add_u32 v{vCAa}, s56, v{vCAa}')
    a(f's_mul_i32 s56, s54, 7680')
    a(f's_mul_i32 s57, s55, 640')
    a(f's_sub_u32 s56, s56, s57')
    a(f's_add_u32 s56, s56, {LU + 2560}')
    a(f'v_and_b32 v{T}, 31, v{vL}')
    a(f'v_mul_u32_u24 v{vCBa}, 80, v{T}')
    a(f'v_lshrrev_b32 v{T}, 5, v{vL}')
    a(f'v_lshl_add_u32 v{vCBa}, v{T}, 4, v{vCBa}')
    a(f'v_add_u32 v{vCBa}, s56, v{vCBa}')

def conv_reads(vCAa, vCBa, vF, ks):
    A1, A2, B1, B2 = vF, vF+4, vF+8, vF+12
    o = 32*ks
    return [f'ds_read_b64 v[{A1}:{A1+1}], v{vCAa} offset:{2048+o}',
            f'ds_read_b64 v[{A1+2}:{A1+3}], v{vCAa} offset:{2048+o+8}',
            f'ds_read_b128 v[{B1}:{B1+3}], v{vCBa} offset:{o}',
            f'ds_read_b128 v[{B2}:{B2+3}], v{vCBa} offset:{2560+o}',
            f'ds_read_b64 v[{A2}:{A2+1}], v{vCAa} offset:{o}',
            f'ds_read_b64 v[{A2+2}:{A2+3}], v{vCAa} offset:{o+8}']

def conv_mfmas(vAcc, vF):
    A1, A2, B1, B2 = vF, vF+4, vF+8, vF+12
    m = lambda D, A, B: f'v_mfma_f32_32x32x16_bf16 v[{D}:{D+15}], v[{A}:{A+3}], v[{B}:{B+3}], v[{D}:{D+15}]'
    return [m(vAcc, A1, B1), m(vAcc+16, A1, B2), m(vAcc+16, A2, B1)]

def conv_finish(a, SWS, sX, sTB, sWv, vL, vAcc, T):
    a(f's_lshr_b32 s54, s{sWv}, 2')
    a(f's_and_b32 s55, s{sWv}, 3')
    a(f's_lshl_b32 s56, s54, 15')
    a(f's_lshl_b32 s57, s55, 11')
    a(f's_add_u32 s57, s57, s56')
    a(f's_add_u32 s57, s57, {LRX}')
    a(f'v_lshl_add_u32 v{T}, v{vL}, 4, s57')
    for j in range(4):
        a(f'ds_write_b128 v{T}, v[{vAcc+4*j}:{vAcc+4*j+3}] offset:{8192*j}')
        a(f'ds_write_b128 v{T}, v[{vAcc+16+4*j}:{vAcc+16+4*j+3}] offset:{8192*j+1024}')
    a('s_waitcnt lgkmcnt(0)')
    a('s_barrier')
    a(f's_lshl_b32 s57, s55, 13')
    a(f's_add_u32 s57, s57, s56')
    a(f's_add_u32 s57, s57, {LRX}')
    a(f'v_lshl_add_u32 v{T}, v{vL}, 4, s57')
    R = vAcc
    for s in range(4):
        a(f'ds_read_b128 v[{R+8*s}:{R+8*s+3}], v{T} offset:{2048*s}')
        a(f'ds_read_b128 v[{R+8*s+4}:{R+8*s+7}], v{T} offset:{2048*s+1024}')
    a(f'v_and_b32 v{T}, 31, v{vL}')
    a(f'v_lshlrev_b32 v{T}, 6, v{T}')
    a(f'v_lshrrev_b32 v{T+1}, 5, v{vL}')
    a(f'v_lshl_add_u32 v{T}, v{T+1}, 3, v{T}')
    a(f's_lshl_b32 s56, s54, 12')
    a(f's_lshl_b32 s57, s55, 4')
    a(f's_add_u32 s56, s56, s57')
    a(f's_add_u32 s56, s56, {LY}')
    a(f'v_add_u32 v{T}, s56, v{T}')
    a('s_waitcnt lgkmcnt(0)')
    for i in range(8):
        a(f'v_add_f32 v{R+i}, v{R+i}, v{R+8+i}')
        a(f'v_add_f32 v{R+16+i}, v{R+16+i}, v{R+24+i}')
    for i in range(8): a(f'v_add_f32 v{R+i}, v{R+i}, v{R+16+i}')
    for i in range(4): a(f'v_cvt_pk_bf16_f32 v{R+16+i}, v{R+2*i}, v{R+2*i+1}')
    a(f'ds_write_b64 v{T}, v[{R+16}:{R+17}]')
    a(f'ds_write_b64 v{T}, v[{R+18}:{R+19}] offset:2048')
    a('s_waitcnt lgkmcnt(0)')
    a('s_barrier')
    a(f'v_lshlrev_b32 v{T}, 4, v0')
    a(f'ds_read_b128 v[{R}:{R+3}], v{T} offset:{LY}' if LY < 65536 else f'v_add_u32 v{T+1}, {LY}, v{T}')
    if LY >= 65536: a(f'ds_read_b128 v[{R}:{R+3}], v{T+1}')
    a(f's_lshl_b32 s54, s{sX}, 6')
    a(f's_lshl_b32 s55, s{sTB}, 1')
    a(f's_add_u32 s54, s54, s55')
    a(f's_lshl_b32 s54, s54, 12')
    a(f's_add_u32 s54, s54, {WS_YT}')
    a('s_waitcnt lgkmcnt(0)')
    a(f'buffer_store_dwordx4 v[{R}:{R+3}], v{T}, s[{SWS}:{SWS+3}], s54 offen')
```

```python
import sys, os
sys.path.insert(0, os.path.dirname(__file__))
from common import *
import importlib

HEADER = open('cdna_kernels/'+NAME+'.s.ref').read().split('; Override launch geometry')[0]

def build(kernels, out, verbose=False):
    body=[]; descs=[]; launches=[]
    for label, gen, grid, block in kernels:
        a = Asm()
        vg, lds = gen(a, label)
        lines, pad = fix_hazards(a.lines, verbose)
        print(f'{label}: {sum(1 for l in lines if isinstance(l,str) and not l.endswith(":") and not l.startswith((";",".")))} instrs, {pad} nop states inserted, vgpr {vg}, lds {lds}')
        body += kernel_header(label) + lines
        descs.append(kernel_desc(label, vg))
        launches.append(f'; @launch kernel={label} grid=({grid},1,1) block=({block},1,1) lds={lds}')
    txt = HEADER + '\n'.join(launches) + '\n'
    txt += '.amdgcn_target "amdgcn-amd-amdhsa--gfx950"\n.text\n'
    txt += render(body)
    txt += '.section .rodata,"a"\n' + ''.join('.p2align 6\n'+d+'\n' for d in descs)
    open(out,'w').write(txt)

if __name__ == '__main__':
    import k1
    ks = [('k1_kernel', k1.gen_k1, 256, 512)]
    which = sys.argv[1] if len(sys.argv)>1 else 'k1'
    out = sys.argv[2] if len(sys.argv)>2 else 'test.s'
    if which in ('k12','all','k12n'):
        import k2
        ks.append(('k2_kernel', k2.gen_k2, 256, 512))
    if which == 'all':
        import k3
        ks.append(('k3_kernel', k3.gen_k3, 256, 512))
    build(ks, out, verbose='-v' in sys.argv)
```

```python
from common import *
import ssm, struct, os

def f32bits(x): return struct.unpack('<I', struct.pack('<f', x))[0]
QSCALE = 0.25*1.4426950408889634

WS_FL    = 0xE00000
WS_EPOCH = 0xE10000
F_UT, F_KV, F_O, F_Y = 0, 1, 2, 3

L_UTS  = 131072
L_QX   = L_UTS + 8448
L_QF   = 114688
ssm.LK, ssm.LZ = 0, 4352
ssm.LW = ssm.LZ + 2*16896
ssm.LC = 65536 + 0
ssm.LU = ssm.LC + 33280
ssm.LRX = 65536
L_OX   = 131072
ssm.LY = L_OX + 24576
L_OF   = 131072
LDS_TOTAL = 163840
assert ssm.LU + 15360 <= L_QF and ssm.LY + 8192 <= LDS_TOTAL and L_QX + 16384 <= LDS_TOTAL

sTB, sX, sWv, sHd, sKH = 3, 4, 5, 6, 7
SA, SB, SC, SWS = 12, 16, 20, 24
sOff, sMask, sCnt = 30, 32, 34
sWoS, sWoM = 28, 29
pX, pW, pWO, pU, pLA, pAI, pCR, pCI, pLDT, pDSK, pOUT, pWS = 36, 38, 40, 42, 44, 46, 48, 60, 62, 64, 66, 68
sNon = 98
vL, vT0, vT1, vT2, vT3 = 1, 2, 3, 4, 5
vKA, vVA = 10, 11
vQ, vK, vV, vS, vP, vO, vM = 12, 20, 36, 68, 100, 116, 148
vCAcc, vCF, vCAa, vCBa = 152, 184, 200, 201
vWoA = 202
vNrm, vMulT, vThr = 203, 224, 225
vB, vI = 204, 212
NVGPR = 226

PRIO_PASSES = int(os.environ.get('PRIO', '6'))

class St:
    def __init__(self): self.n = 0
    def first(self, a):
        if STAMP: a('s_memrealtime s[94:95]')
        self.mark(a)
    def mark(self, a):
        if not STAMP: return
        assert self.n < 12
        a(f's_memtime s[{70+2*self.n}:{71+2*self.n}]'); self.n += 1
    def flush(self, a):
        if not STAMP: return
        a('s_memrealtime s[96:97]')
        a('s_waitcnt lgkmcnt(0)')
        a(f's_lshl_b32 s8, s2, 3')
        a(f's_add_u32 s8, s8, s{sWv}')
        a(f's_lshl_b32 s8, s8, 6')
        a(f's_add_u32 s8, s8, {WS_ST}')
        a('s_mov_b64 exec, 1')
        a('v_mov_b32 v3, 0')
        for i in range(12):
            a(f'v_mov_b32 v4, s{70+2*i}')
            a(f'buffer_store_dword v4, v3, s[{SWS}:{SWS+3}], s8 offen offset:{4*i}')
        a('v_mov_b32 v4, s94'); a('v_mov_b32 v5, s96')
        a(f'buffer_store_dwordx2 v[4:5], v3, s[{SWS}:{SWS+3}], s8 offen offset:48')
        a('s_waitcnt vmcnt(0)')

def mf(D, A, B, C): return f'v_mfma_f32_32x32x16_bf16 v[{D}:{D+15}], v[{A}:{A+3}], v[{B}:{B+3}], ' + ('0' if C is None else f'v[{C}:{C+15}]')

def flag_store(a, fset, idx_sgpr, tmp):
    a(f's_lshl_b32 s8, s{idx_sgpr}, 6')
    a(f's_add_u32 s8, s8, {WS_FL + fset*16384}')
    a(f'v_mov_b32 v{tmp}, s{sNon}')
    a(f'v_mov_b32 v{tmp+1}, s{sNon+1}')
    a(f'v_mov_b32 v{tmp+2}, 0')
    a('s_mov_b64 s[10:11], exec')
    a('s_mov_b64 exec, 1')
    a(f'buffer_store_dwordx2 v[{tmp}:{tmp+1}], v{tmp+2}, s[{SWS}:{SWS+3}], s8 offen sc1')
    a('s_mov_b64 exec, s[10:11]')

def flag_poll(a, name, fset, first_sgpr, n, tmp):
    a(f's_lshl_b32 s8, s{first_sgpr}, 6')
    a(f's_add_u32 s8, s8, {WS_FL + fset*16384}')
    a(f'v_lshlrev_b32 v{tmp+2}, 6, v{vL}')
    a('s_mov_b64 s[10:11], exec')
    a(f's_mov_b64 exec, {hex((1 << n) - 1)}')
    a('s_mov_b32 s9, 0x40000')
    a(f'{name}:')
    a(f'buffer_load_dwordx2 v[{tmp}:{tmp+1}], v{tmp+2}, s[{SWS}:{SWS+3}], s8 offen sc1')
    a('s_waitcnt vmcnt(0)')
    a(f'v_cmp_eq_u32 vcc, s{sNon}, v{tmp}')
    a(f'v_cmp_eq_u32 s[100:101], s{sNon+1}, v{tmp+1}')
    a('s_sub_u32 s9, s9, 1')
    a('s_cmp_eq_u32 s9, 0')
    a(f's_cbranch_scc1 {name}_x')
    a('s_and_b64 vcc, vcc, s[100:101]')
    a('s_cmp_eq_u64 vcc, exec')
    a(f's_cbranch_scc0 {name}')
    a(f'{name}_x:')
    a('s_mov_b64 exec, s[10:11]')

def wave0(a, name, body):
    a(f's_cmp_lg_u32 s{sWv}, 0')
    a(f's_cbranch_scc1 {name}')
    body()
    a(f'{name}:')

def tile_loads(slot):
    k = vK+4*slot; v = vV+8*slot
    return [f'buffer_load_dwordx4 v[{k}:{k+3}], v{vKA}, s[{SB}:{SB+3}], s{sOff} offen sc1',
            f's_mov_b64 exec, s[{sMask}:{sMask+1}]',
            f'buffer_load_dwordx4 v[{v}:{v+3}], v{vVA}, s[{SB}:{SB+3}], s{sOff} offen sc1',
            f'buffer_load_dwordx4 v[{v+4}:{v+7}], v{vVA}, s[{SB}:{SB+3}], s{sOff} offen offset:512 sc1',
            f's_mov_b64 exec, -1',
            f's_add_u32 s{sOff}, s{sOff}, 2048',
            f's_and_b32 s{sOff}, s{sOff}, 0xffff']

def wo_piece():
    return [f's_add_u32 m0, s{sWoM}, s{sWoS}',
            f's_lshl_b32 s35, s{sWoS}, 2',
            f'buffer_load_dwordx4 v{vWoA}, s[{SC}:{SC+3}], s35 offen lds',
            f's_add_u32 s{sWoS}, s{sWoS}, 1024',
            f's_and_b32 s{sWoS}, s{sWoS}, 0x1fff']

def unit(t, q, safe):
    u = 2*t+q
    S = vS+16*(u%2); P = vP+8*(u%2)
    Sn = vS+16*((u+1)%2); Pp = vP+8*((u+1)%2)
    tn, qn = (t+(q==1), (q+1)%2)
    tp, qp = (t-(q==0), (q+1)%2)
    qk  = mf(Sn, vK+4*(tn%4), vQ+4*qn, None)
    pv1 = mf(vO+16*qp, vV+8*(tp%4),   Pp,   vO+16*qp)
    pv2 = mf(vO+16*qp, vV+8*(tp%4)+4, Pp+4, vO+16*qp)
    ex = lambda i: f'v_exp_f32 v{S+i}, v{S+i}'
    cv = lambda i: f'v_cvt_pk_bf16_f32 v{P+i}, v{S+2*i}, v{S+2*i+1}'
    ld = tile_loads((t+3)%4) if q == 1 else []
    if safe:
        m = vM+q; O = vO+16*q
        L = [f'v_max3_f32 v{vT0}, v{S}, v{S+1}, v{S+2}']
        for i in range(3, 15, 2): L.append(f'v_max3_f32 v{vT0}, v{vT0}, v{S+i}, v{S+i+1}')
        L += [f'v_max_f32 v{vT0}, v{vT0}, v{S+15}', f'v_mov_b32 v{vT1}, v{vT0}',
              f'v_permlane32_swap_b32 v{vT0}, v{vT1}', f'v_max_f32 v{vT0}, v{vT0}, v{vT1}',
              f'v_max_f32 v{vT0}, v{vT0}, v{m}', f'v_sub_f32 v{vT1}, v{m}, v{vT0}', f'v_mov_b32 v{m}, v{vT0}',
              f'v_exp_f32 v{vT1}, v{vT1}']
        L += [f'v_sub_f32 v{S+i}, v{S+i}, v{vT0}' for i in range(16)]
        L += [f'v_mul_f32 v{O+i}, v{vT1}, v{O+i}' for i in range(9)]
        if q == 1: L += ['s_waitcnt vmcnt(3)']
        L += [qk] + [ex(i) for i in range(16)] + ld + [pv1, pv2] + [cv(i) for i in range(8)]
        return L
    cm = ssm.conv_mfmas(vCAcc, vCF)
    xe, xm = [], []
    if u == 0: xe = ssm.conv_reads(vCAa, vCBa, vCF, 0)
    if u == 4: xe = ssm.conv_reads(vCAa, vCBa, vCF, 1) + [f'v_add_u32 v{vCAa}, -64, v{vCAa}', f'v_subrev_u32 v{vCBa}, 80, v{vCBa}']
    if u in (1, 5): xm = ['s_waitcnt lgkmcnt(0)', cm[0]]
    if u in (2, 6): xm = [cm[1]]
    if u in (3, 7): xm = [cm[2]]
    L = [ex(0), ex(1)]
    if q == 1: L += [f's_waitcnt vmcnt({4 if t < 2 else 3})']
    L += [qk, ex(2), ex(3), cv(0)]
    L += [ex(4)] + ld[:1] + xe[:2] + [ex(5), cv(1), ex(6)] + ld[1:5] + xe[2:4] + [ex(7), cv(2), pv1, ex(8)] + ld[5:] + xe[4:6] + [ex(9), cv(3), ex(10)] + xe[6:]
    if u == 7: L += wo_piece()
    L += [ex(11), cv(4), ex(12)] + xm + [ex(13), cv(5), pv2, ex(14), ex(15), cv(6), cv(7)]
    return L

def gen(a, label):
    st = St()
    a(f's_cmp_ge_u32 s2, 256')
    a(f's_cbranch_scc1 {label}_end')
    st.first(a)
    a(f's_load_dwordx8 s[36:43], s[0:1], 0')
    a(f's_load_dwordx2 s[{pWS}:{pWS+1}], s[0:1], {K_WS}')
    a(f's_load_dwordx4 s[44:47], s[0:1], {K_LA}')
    a(f's_load_dwordx2 s[48:49], s[0:1], {K_CR}')
    a(f's_load_dwordx8 s[60:67], s[0:1], {K_CI}')
    a(f's_and_b32 s{sX}, s2, 7')
    a(f's_lshr_b32 s{sTB}, s2, 3')
    a(f'v_lshrrev_b32 v{vT0}, 6, v0')
    a(f'v_and_b32 v{vL}, 63, v0')
    a(f'v_readfirstlane_b32 s{sWv}, v{vT0}')
    sM0 = 28; sSo = 35
    vXo, vWo, vQo, vUo, vU = 6, 7, 8, 9, 10
    a(f'v_lshrrev_b32 v{vT0}, 3, v{vL}')
    a(f's_lshl_b32 s8, s{sWv}, 3')
    a(f'v_add_u32 v{vT0}, s8, v{vT0}')
    a(f'v_bfe_u32 v{vT1}, v{vT0}, 1, 3')
    a(f'v_and_b32 v{vT2}, 7, v{vL}')
    a(f'v_xor_b32 v{vT1}, v{vT1}, v{vT2}')
    a(f's_lshl_b32 s9, s{sTB}, 6')
    a(f'v_add_u32 v{vT3}, s9, v{vT0}')
    a(f'v_lshlrev_b32 v{vXo}, 10, v{vT3}')
    a(f'v_lshl_add_u32 v{vXo}, v{vT1}, 4, v{vXo}')
    a(f'v_mul_u32_u24 v{vQo}, 3072, v{vT0}')
    a(f'v_lshrrev_b32 v{vT1}, 2, v{vT2}')
    a(f'v_bfe_u32 v{vT3}, v{vL}, 4, 1')
    a(f'v_xor_b32 v{vT1}, v{vT1}, v{vT3}')
    a(f'v_lshl_add_u32 v{vQo}, v{vT1}, 6, v{vQo}')
    a(f'v_and_b32 v{vT1}, 3, v{vT2}')
    a(f'v_lshl_add_u32 v{vQo}, v{vT1}, 4, v{vQo}')
    a(f's_lshl_b32 s10, s{sX}, 7')
    a(f'v_add_u32 v{vQo}, s10, v{vQo}')
    a(f'v_lshrrev_b32 v{vT0}, 4, v{vL}')
    a(f'v_add_u32 v{vT1}, s8, v{vT0}')
    a(f'v_mul_u32_u24 v{vWo}, 3072, v{vT1}')
    a(f'v_bfe_u32 v{vT1}, v{vL}, 2, 2')
    a(f'v_xor_b32 v{vT1}, v{vT1}, v{vT0}')
    a(f'v_and_b32 v{vT2}, 1, v{vT1}')
    a(f'v_lshl_add_u32 v{vWo}, v{vT2}, 6, v{vWo}')
    a(f'v_lshrrev_b32 v{vT2}, 1, v{vT1}')
    a(f'v_lshl_add_u32 v{vWo}, v{vT2}, 10, v{vWo}')
    a(f'v_and_b32 v{vT2}, 3, v{vL}')
    a(f'v_lshl_add_u32 v{vWo}, v{vT2}, 4, v{vWo}')
    a(f's_add_u32 s11, s10, 1024')
    a(f'v_add_u32 v{vWo}, s11, v{vWo}')
    a(f's_lshl_b32 s{sM0}, s{sWv}, 10')
    a(f's_lshl_b32 s{sM0+1}, s{sWv}, 11')
    a(f's_add_u32 s{sM0+1}, s{sM0+1}, 8192')
    a(f's_add_u32 s{sM0+2}, s{sM0+1}, 1024')
    a(f's_add_u32 s{sM0+3}, s{sM0}, 24576')
    a('s_waitcnt lgkmcnt(0)')
    srd(a, SA, pX, 2048*1024)
    srd(a, SB, pW, 512*3072)
    def dma(c):
        slot = c % 4
        a(f's_add_u32 m0, s{sM0}, {slot*32768}')
        a(f's_movk_i32 s{sSo}, {128*c}')
        a(f'buffer_load_dwordx4 v{vXo}, s[{SA}:{SA+3}], s{sSo} offen lds')
        a(f's_add_u32 m0, s{sM0+1}, {slot*32768}')
        a(f's_mov_b32 s{sSo}, {196608*c}')
        a(f'buffer_load_dwordx4 v{vWo}, s[{SB}:{SB+3}], s{sSo} offen lds')
        a(f's_add_u32 m0, s{sM0+2}, {slot*32768}')
        a(f's_mov_b32 s9, {196608*c+12288}')
        a(f'buffer_load_dwordx4 v{vWo}, s[{SB}:{SB+3}], s9 offen lds')
        a(f's_add_u32 m0, s{sM0+3}, {slot*32768}')
        a(f's_nop 0')
        a(f'buffer_load_dwordx4 v{vQo}, s[{SB}:{SB+3}], s{sSo} offen lds')
    dma(0)
    srd(a, SC, pU, 2048*1024)
    srd(a, SWS, pWS, WS_SIZE)
    a(f'v_lshrrev_b32 v{vT0}, 3, v0')
    a(f's_lshl_b32 s9, s{sTB}, 6')
    a(f'v_add_u32 v{vT1}, s9, v{vT0}')
    a(f'v_lshlrev_b32 v{vUo}, 10, v{vT1}')
    a(f'v_and_b32 v{vT1}, 7, v0')
    a(f'v_lshl_add_u32 v{vUo}, v{vT1}, 4, v{vUo}')
    a(f'v_add_u32 v{vUo}, s10, v{vUo}')
    a(f'buffer_load_dwordx4 v[{vU}:{vU+3}], v{vUo}, s[{SC}:{SC+3}], 0 offen')
    a(f's_add_u32 s8, s{pWS}, {WS_EPOCH}')
    a(f's_addc_u32 s9, s{pWS+1}, 0')
    a(f's_load_dwordx2 s[{sNon}:{sNon+1}], s[8:9], 0')
    a('s_barrier')
    dma(1)
    sKV, sTT, sCP = 50, 51, 52
    a(f's_lshr_b32 s{sKV}, s{sWv}, 2')
    a(f's_bfe_u32 s{sTT}, s{sWv}, 0x10001')
    a(f's_and_b32 s{sCP}, s{sWv}, 1')
    vXA, vWA, vQA = 14, 22, 24
    a(f'v_and_b32 v{vT0}, 31, v{vL}')
    a(f'v_lshrrev_b32 v{vT1}, 5, v{vL}')
    a(f'v_bfe_u32 v{vT2}, v{vL}, 1, 3')
    a(f'v_xor_b32 v{vT1}, v{vT1}, v{vT2}')
    a(f's_lshl_b32 s8, s{sTT}, 5')
    a(f'v_add_u32 v{vT0}, s8, v{vT0}')
    a(f'v_lshlrev_b32 v{vT0}, 7, v{vT0}')
    for j in range(4):
        a(f'v_xor_b32 v{vT2}, {2*j}, v{vT1}')
        a(f'v_lshl_add_u32 v{vXA+j}, v{vT2}, 4, v{vT0}')
        a(f'v_add_u32 v{vXA+4+j}, 0x10000, v{vXA+j}')
    a('s_barrier')
    dma(2)
    a(f'v_bfe_u32 v{vT0}, v{vL}, 2, 2')
    a(f'v_lshrrev_b32 v{vT1}, 5, v{vL}')
    a(f'v_lshl_add_u32 v{vT1}, v{vT1}, 3, v{vT0}')
    a(f'v_bfe_u32 v{vT2}, v{vL}, 4, 1')
    a(f'v_lshlrev_b32 v{vT2}, 5, v{vT2}')
    a(f'v_and_b32 v{vT3}, 3, v{vL}')
    a(f'v_lshl_add_u32 v{vT2}, v{vT3}, 3, v{vT2}')
    a(f's_lshl_b32 s8, s{sKV}, 1')
    a(f's_add_u32 s8, s8, s{sCP}')
    a(f'v_xor_b32 v{vT3}, s8, v{vT0}')
    a(f'v_lshl_add_u32 v{vWA}, v{vT3}, 6, v{vT2}')
    a(f'v_lshl_add_u32 v{vWA}, v{vT1}, 8, v{vWA}')
    a(f'v_add_u32 v{vWA}, 8192, v{vWA}')
    a(f'v_add_u32 v{vWA+1}, 0x10000, v{vWA}')
    a(f'v_lshrrev_b32 v{vT3}, 1, v{vT0}')
    a(f'v_xor_b32 v{vT3}, s{sCP}, v{vT3}')
    a(f'v_lshl_add_u32 v{vQA}, v{vT3}, 6, v{vT2}')
    a(f'v_lshl_add_u32 v{vQA}, v{vT1}, 7, v{vQA}')
    a(f'v_add_u32 v{vQA}, 24576, v{vQA}')
    a(f'v_add_u32 v{vQA+1}, 0x10000, v{vQA}')
    a('s_barrier')
    dma(3)
    vAcc, vQAcc, vXF, vWF, vQF = 32, 48, 64, 96, 128
    for i in range(32): a(f'v_mov_b32 v{vAcc+i}, 0')
    a(f'v_lshrrev_b32 v{vT0}, 3, v0')
    a(f'v_mul_u32_u24 v{vT0}, 132, v{vT0}')
    a(f'v_and_b32 v{vT1}, 7, v0')
    a(f'v_lshl_add_u32 v{vT0}, v{vT1}, 4, v{vT0}')
    a(f'v_add_u32 v{vT0}, {L_UTS}, v{vT0}')
    a('s_waitcnt vmcnt(12) lgkmcnt(0)')
    for i in range(4): a(f'ds_write_b32 v{vT0}, v{vU+i} offset:{4*i}')
    a(f's_mul_i32 s{sNon}, s{sNon}, 0x9E3779B1')
    a(f's_add_u32 s{sNon}, s{sNon}, 0x7F4A7C15')
    a(f's_mul_i32 s{sNon+1}, s{sNon+1}, 0x85EBCA6D')
    a(f's_add_u32 s{sNon+1}, s{sNon+1}, 0x165667B1')
    sIdA, sIdB = 53, 49
    a(f's_lshl_b32 s{sIdA}, s{sX}, 5')
    a(f's_add_u32 s{sIdA}, s{sIdA}, s{sTB}')

    def u_out():
        a(f'v_and_b32 v{vT0}, 7, v0')
        a(f'v_mul_u32_u24 v{vT0}, {8*132}, v{vT0}')
        a(f'v_lshrrev_b32 v{vT1}, 3, v0')
        a(f'v_lshl_add_u32 v{vT0}, v{vT1}, 1, v{vT0}')
        a(f'v_add_u32 v{vT0}, {L_UTS}, v{vT0}')
        R = 144
        for e in range(8):
            a(f'ds_read_u16_d16{"_hi" if e%2 else ""} v{R+e}, v{vT0} offset:{132*e}')
        a(f's_lshl_b32 s8, s{sX}, 6')
        a(f'v_add_u32 v{vT1}, s8, v{vT1}')
        a(f'v_lshlrev_b32 v{vT1}, 12, v{vT1}')
        a(f'v_and_b32 v{vT2}, 7, v0')
        a(f'v_lshl_add_u32 v{vT1}, v{vT2}, 4, v{vT1}')
        a(f's_lshl_b32 s8, s{sTB}, 7')
        a(f's_add_u32 s8, s8, {WS_UT}')
        a('s_waitcnt lgkmcnt(0)')
        for de in range(4): a(f'v_or_b32 v{vU+de}, v{R+2*de}, v{R+2*de+1}')
        a(f'buffer_store_dwordx4 v[{vU}:{vU+3}], v{vT1}, s[{SWS}:{SWS+3}], s8 offen sc1')

    def gemm(isV, sfx):
        nwait = [12, 8, 9, 9, 9, 8+12, 4+12, 12]
        for c in range(8):
            slot = c % 4; hi = slot >= 2; so = (slot % 2)*32768
            a(f's_waitcnt vmcnt({nwait[c]}) lgkmcnt(0)')
            a('s_barrier')
            if c == 0: st.mark(a) if not isV else st.mark_dup(a)
            if 1 <= c <= 4: dma(c+3)
            if c == 1: u_out()
            if c == 4:
                ssm.kgen_loads(a, dict(la=pLA, ai=pAI, cr=pCR, ci=pCI, ldt=pLDT, dsk=pDSK), sX, sTB, sWv, vL, vB)
                ssm.idx_loads(a, label + sfx, vI, vT0, label)
                a(f's_lshr_b32 s{sKV}, s{sWv}, 2')
                a(f's_bfe_u32 s{sTT}, s{sWv}, 0x10001')
                a(f's_and_b32 s{sCP}, s{sWv}, 1')
                a(f's_lshl_b32 s{sIdA}, s{sX}, 5')
                a(f's_add_u32 s{sIdA}, s{sIdA}, s{sTB}')
            if c == 5:
                wave0(a, f'{label}_fut{sfx}', lambda: flag_store(a, F_UT, sIdA, vT0))
            doq = (c % 2 == 1) if isV else (c % 2 == 0)
            for j in range(4):
                a(f'ds_read_b128 v[{vXF+4*j}:{vXF+4*j+3}], v{vXA+(4 if hi else 0)+j} offset:{so}')
                for s in range(2):
                    a(f'ds_read_b64_tr_b16 v[{vWF+4*j+2*s}:{vWF+4*j+2*s+1}], v{vWA+(1 if hi else 0)} offset:{so+4096*j+1024*s}')
                if doq:
                    for s in range(2):
                        a(f'ds_read_b64_tr_b16 v[{vQF+4*j+2*s}:{vQF+4*j+2*s+1}], v{vQA+(1 if hi else 0)} offset:{so+2048*j+512*s}')
            per = 5 if doq else 3
            for j in range(4):
                a(f's_waitcnt lgkmcnt({min(per*(3-j), 15)})')
                X, W, Q = vXF+4*j, vWF+4*j, vQF+4*j
                a(mf(vAcc, X, W, vAcc) if isV else mf(vAcc, W, X, vAcc))
                if doq: a(mf(vQAcc, Q, X, vQAcc))

    def kvbase():
        a(f's_lshl_b32 s8, s{sX}, 2')
        a(f's_lshl_b32 s9, s{sCP}, 1')
        a(f's_add_u32 s8, s8, s9')
        a(f's_lshl_b32 s8, s8, 1')
        a(f's_add_u32 s8, s8, s{sTT}')
        a(f's_lshl_b32 s10, s8, 16')
        a(f's_lshl_b32 s9, s{sTB}, 11')
        a(f's_add_u32 s10, s10, s9')
        a(f's_lshl_b32 s11, s8, 7')
        a(f's_lshl_b32 s9, s{sTB}, 2')
        a(f's_add_u32 s11, s11, s9')

    def qsend(isV):
        send = vQAcc + (0 if isV else 8)
        a(f'v_lshlrev_b32 v{vT0}, 4, v{vL}')
        a(f's_lshl_b32 s8, s{sWv}, 11')
        a(f's_add_u32 s8, s8, {L_QX}')
        a(f'v_add_u32 v{vT1}, s8, v{vT0}')
        a(f'ds_write_b128 v{vT1}, v[{send}:{send+3}]')
        a(f'ds_write_b128 v{vT1}, v[{send+4}:{send+7}] offset:1024')

    def qfinal(isV):
        keep = vQAcc + (8 if isV else 0)
        a(f'v_lshlrev_b32 v{vT0}, 4, v{vL}')
        a(f's_xor_b32 s8, s{sWv}, 4')
        a(f's_lshl_b32 s8, s8, 11')
        a(f's_add_u32 s8, s8, {L_QX}')
        a(f'v_add_u32 v{vT2}, s8, v{vT0}')
        R = vXF
        a(f'ds_read_b128 v[{R}:{R+3}], v{vT2}')
        a(f'ds_read_b128 v[{R+4}:{R+7}], v{vT2} offset:1024')
        a(f's_lshl_b32 s8, s{sCP}, 1')
        if isV: a(f's_add_u32 s8, s8, 1')
        a(f's_lshl_b32 s8, s8, 1')
        a(f's_add_u32 s8, s8, s{sTT}')
        a(f's_lshl_b32 s8, s8, 10')
        a(f's_add_u32 s8, s8, {L_QF}')
        a(f'v_add_u32 v{vT2}, s8, v{vT0}')
        a(f's_mov_b32 s9, {hex(f32bits(QSCALE))}')
        a('s_waitcnt lgkmcnt(0)')
        for i in range(8):
            a(f'v_add_f32 v{R+i}, v{R+i}, v{keep+i}')
            a(f'v_mul_f32 v{R+i}, s9, v{R+i}')
        for i in range(4): a(f'v_cvt_pk_bf16_f32 v{R+8+i}, v{R+2*i}, v{R+2*i+1}')
        a(f'ds_write_b128 v{vT2}, v[{R+8}:{R+11}]')

    def publish(sfx):
        a('s_waitcnt vmcnt(0) lgkmcnt(0)')
        a('s_barrier')
        wave0(a, f'{label}_fkv{sfx}', lambda: flag_store(a, F_KV, sIdA, vT0))

    st.mark_dup = lambda a_: St.dupmark(st, a_)
    vP1 = 64
    a(f's_cmp_eq_u32 s{sKV}, 1')
    a(f's_cbranch_scc1 {label}_v')
    n0 = st.n
    gemm(False, '_k')
    st.mark(a)
    kvbase()
    for i in range(8): a(f'v_cvt_pk_bf16_f32 v{vP1+i}, v{vAcc+2*i}, v{vAcc+2*i+1}')
    a(f'v_lshlrev_b32 v{vT0}, 4, v{vL}')
    a(f'buffer_store_dwordx4 v[{vP1}:{vP1+3}], v{vT0}, s[{SWS}:{SWS+3}], s10 offen sc1')
    a(f's_add_u32 s8, s10, {2*65536}')
    a(f'buffer_store_dwordx4 v[{vP1+4}:{vP1+7}], v{vT0}, s[{SWS}:{SWS+3}], s8 offen sc1')
    for h in range(2): a(f'v_mov_b32 v{76+h}, 0')
    for i in range(4):
        for h in range(2): a(f'v_dot2_f32_bf16 v{76+h}, v{vP1+4*h+i}, v{vP1+4*h+i}, v{76+h}')
    qsend(False)
    for h in range(2): a(f'v_mov_b32 v{78+h}, v{76+h}')
    for h in range(2): a(f'v_permlane32_swap_b32 v{76+h}, v{78+h}')
    for h in range(2): a(f'v_add_f32 v{76+h}, v{76+h}, v{78+h}')
    a(f'v_permlane32_swap_b32 v76, v77')
    for r in (1, 2, 4, 8): a(f'v_max_f32_dpp v76, v76, v76 row_ror:{r} row_mask:0xf bank_mask:0xf')
    a(f'v_mov_b32 v77, v76')
    a(f'v_permlane16_swap_b32 v76, v77')
    a(f'v_max_f32 v76, v76, v77')
    a(f'v_lshrrev_b32 v{vT1}, 5, v{vL}')
    a(f'v_lshlrev_b32 v{vT1}, 8, v{vT1}')
    a(f's_add_u32 s8, s11, {WS_KN}')
    a(f's_mov_b32 s10, 1')
    a(f's_mov_b32 s11, 1')
    a(f's_mov_b64 exec, s[10:11]')
    a(f'buffer_store_dword v76, v{vT1}, s[{SWS}:{SWS+3}], s8 offen sc1')
    a(f's_mov_b64 exec, -1')
    publish('_k')
    qfinal(False)
    a(f's_branch {label}_g1')
    a(f'{label}_v:')
    st.n = n0
    gemm(True, '_v')
    st.mark_dup(a)
    kvbase()
    for i in range(8): a(f'v_cvt_pk_bf16_f32 v{vP1+i}, v{vAcc+2*i}, v{vAcc+2*i+1}')
    a(f'v_bfe_u32 v{vT0}, v{vL}, 4, 1')
    a(f'v_lshlrev_b32 v{vT0}, 17, v{vT0}')
    a(f'v_lshrrev_b32 v{vT1}, 5, v{vL}')
    a(f'v_lshl_add_u32 v{vT0}, v{vT1}, 8, v{vT0}')
    a(f'v_and_b32 v{vT1}, 15, v{vL}')
    a(f'v_lshl_add_u32 v{vT0}, v{vT1}, 4, v{vT0}')
    a(f'buffer_store_dwordx4 v[{vP1}:{vP1+3}], v{vT0}, s[{SWS}:{SWS+3}], s10 offen offset:1024 sc1')
    a(f'buffer_store_dwordx4 v[{vP1+4}:{vP1+7}], v{vT0}, s[{SWS}:{SWS+3}], s10 offen offset:1536 sc1')
    a(f'v_mov_b32 v76, 0')
    a(f'v_mov_b32 v77, 0')
    for i in range(4):
        a(f'v_dot2_f32_bf16 v76, v{vP1+i}, v{vP1+i}, v76')
        a(f'v_dot2_f32_bf16 v77, v{vP1+4+i}, v{vP1+4+i}, v77')
    qsend(True)
    a(f'v_add_f32 v76, v76, v77')
    wave_max(a, 'v76', f'v{vT1}')
    a(f'v_lshrrev_b32 v{vT1}, 5, v{vL}')
    a(f'v_lshlrev_b32 v{vT1}, 8, v{vT1}')
    a(f's_add_u32 s8, s11, {WS_VN}')
    a(f's_mov_b32 s10, 1')
    a(f's_mov_b32 s11, 1')
    a(f's_mov_b64 exec, s[10:11]')
    a(f'buffer_store_dword v76, v{vT1}, s[{SWS}:{SWS+3}], s8 offen sc1')
    a(f's_mov_b64 exec, -1')
    publish('_v')
    qfinal(True)
    a(f'{label}_g1:')
    st.mark(a)
    a(f's_and_b32 s{sHd}, s{sWv}, 3')
    a(f's_lshr_b32 s{sKH}, s{sWv}, 2')
    a(f'v_lshlrev_b32 v{vKA}, 4, v{vL}')
    a(f'v_lshrrev_b32 v{vT0}, 5, v{vL}')
    a(f'v_lshlrev_b32 v{vT0}, 8, v{vT0}')
    a(f'v_and_b32 v{vT1}, 15, v{vL}')
    a(f'v_lshl_add_u32 v{vVA}, v{vT1}, 4, v{vT0}')
    a(f'v_add_u32 v{vVA}, 1024, v{vVA}')
    a(f's_mov_b32 s{sMask}, 0x0000ffff')
    a(f's_mov_b32 s{sMask+1}, 0x0000ffff')
    sStr = 48
    a(f's_lshl_b32 s8, s{sX}, 2')
    a(f's_add_u32 s8, s8, s{sHd}')
    a(f's_lshl_b32 s{sStr}, s8, 1')
    a(f's_add_u32 s{sStr}, s{sStr}, s{sKH}')
    a(f's_lshl_b32 s10, s{sStr}, 16')
    a(f's_add_u32 s{SB}, s{pWS}, s10')
    a(f's_addc_u32 s{SB+1}, s{pWS+1}, 0')
    a(f's_and_b32 s{SB+1}, s{SB+1}, 0xffff')
    a(f's_mov_b32 s{SB+2}, 0x10000')
    a(f's_mov_b32 s{SB+3}, 0x20000')
    a(f's_lshl_b32 s{sOff}, s{sTB}, 11')
    a(f'v_and_b32 v{vT0}, 27, v{vL}')
    a(f'v_mov_b32 v{vT1}, 0')
    a(f'v_mov_b32 v{vT2}, 0x3f803f80')
    a(f'v_cmp_eq_u32 vcc, 16, v{vT0}')
    a(f'v_cndmask_b32 v{vT1}, v{vT1}, v{vT2}, vcc')
    for i in range(32): a(f'v_mov_b32 v{vV+i}, v{vT1}')
    for l in tile_loads(0): a(l)
    ssm.kgen_tables(a, label, sWv, vL, vB, 68)
    a('s_waitcnt lgkmcnt(0)')
    a('s_barrier')
    st.mark(a)
    a(f's_lshl_b32 s8, s{sHd}, 11')
    a(f's_add_u32 s8, s8, {L_QF}')
    a(f's_lshl_b32 s9, s{sKH}, 10')
    a(f's_add_u32 s10, s8, s9')
    a(f's_xor_b32 s9, s9, 1024')
    a(f's_add_u32 s11, s8, s9')
    a(f'v_add_u32 v{vT0}, s10, v{vKA}')
    a(f'v_add_u32 v{vT1}, s11, v{vKA}')
    a(f'ds_read_b128 v[{vQ}:{vQ+3}], v{vT0}')
    a(f'ds_read_b128 v[{vQ+4}:{vQ+7}], v{vT1}')
    ssm.kgen_gemm(a, sWv, vL, vB+5, 68, None)
    a(f's_lshl_b32 s{sIdB}, s{sX}, 5')
    wave0(a, f'{label}_put', lambda: flag_poll(a, f'{label}_plu', F_UT, sIdB, 32, vT0))
    a('s_waitcnt lgkmcnt(0)')
    a('s_barrier')
    vU2 = 152
    ssm.u_load(a, SWS, sX, sTB, vU2, vT0)
    a(f'v_mov_b32 v{vMulT}, 0')
    a(f'v_mov_b32 v{vThr}, 0')
    for i in range(4):
        a(f'v_dot2_f32_bf16 v{vMulT}, v{vQ+i}, v{vQ+i}, v{vMulT}')
        a(f'v_dot2_f32_bf16 v{vThr}, v{vQ+4+i}, v{vQ+4+i}, v{vThr}')
    ssm.copies(a, sWv, vI, 68)
    half_sum(a, f'v{vMulT}', f'v{vT1}')
    half_sum(a, f'v{vThr}', f'v{vT1}')
    a(f'v_max_f32 v{vMulT}, v{vMulT}, v{vThr}')
    wave_max(a, f'v{vMulT}', f'v{vT1}')
    a(f'v_cmp_gt_u32 vcc, 32, v{vL}')
    a(f'v_mov_b32 v{vT1}, 1.0')
    a(f'v_mov_b32 v{vT2}, {hex(f32bits(2.0**100))}')
    a(f'v_mov_b32 v{vT3}, {hex(f32bits(3600.0))}')
    a(f'v_cndmask_b32 v{vMulT}, v{vT1}, v{vMulT}, vcc')
    a(f'v_cndmask_b32 v{vThr}, v{vT2}, v{vT3}, vcc')
    a('s_waitcnt vmcnt(0)')
    ssm.u_stage(a, sWv, vU2, 68)
    ssm.conv_addr(a, sWv, vL, vCAa, vCBa, vT0)
    a(f's_and_b32 s8, s{sX}, 1')
    a(f's_lshr_b32 s9, s{sX}, 1')
    a(f'v_lshrrev_b32 v{vT0}, 4, v{vL}')
    a(f's_lshl_b32 s10, s{sWv}, 5')
    a(f'v_add_u32 v{vT1}, s10, v{vT0}')
    a(f'v_lshlrev_b32 v{vWoA}, 10, v{vT1}')
    a(f'v_bfe_u32 v{vT1}, v{vL}, 2, 2')
    a(f'v_xor_b32 v{vT1}, v{vT1}, v{vT0}')
    a(f'v_lshl_add_u32 v{vWoA}, v{vT1}, 6, v{vWoA}')
    a(f'v_and_b32 v{vT1}, 3, v{vL}')
    a(f'v_lshl_add_u32 v{vWoA}, v{vT1}, 4, v{vWoA}')
    a(f's_lshl_b32 s9, s9, 8')
    a(f'v_add_u32 v{vWoA}, s9, v{vWoA}')
    srd(a, SC, pWO, 512*1024)
    a(f's_lshl_b32 s{sWoM}, s{sWv}, 13')
    a(f's_mov_b32 s{sWoS}, 0')
    for i in range(32): a(f'v_mov_b32 v{vCAcc+i}, 0')
    for i in range(32): a(f'v_mov_b32 v{vO+i}, 0')
    for i in range(8): a(f'v_mov_b32 v{vP+8+i}, 0')
    a(f'v_mov_b32 v{vM}, 0')
    a(f'v_mov_b32 v{vM+1}, 0')
    st.mark(a)
    wave0(a, f'{label}_pkv', lambda: flag_poll(a, f'{label}_plk', F_KV, sIdB, 32, vT0))
    a('s_waitcnt lgkmcnt(0)')
    a('s_barrier')
    st.mark(a)
    a(f'v_and_b32 v{vT0}, 31, v{vL}')
    a(f'v_lshlrev_b32 v{vT0}, 2, v{vT0}')
    a(f'v_lshrrev_b32 v{vT1}, 5, v{vL}')
    a(f'v_mul_u32_u24 v{vT1}, {WS_VN-WS_KN}, v{vT1}')
    a(f'v_add_u32 v{vT0}, v{vT0}, v{vT1}')
    a(f's_lshl_b32 s8, s{sStr}, 7')
    a(f's_add_u32 s8, s8, {WS_KN}')
    a(f'buffer_load_dword v{vNrm}, v{vT0}, s[{SWS}:{SWS+3}], s8 offen sc1')
    for s in (1, 2):
        for l in tile_loads(s): a(l)
    for l in wo_piece(): a(l)
    a(mf(vS, vK, vQ, None))
    a(f's_cmp_lt_u32 s{sWv}, 4')
    a(f's_cbranch_scc1 {label}_np')
    a('s_setprio 1')
    a(f'{label}_np:')
    a('s_nop 15')
    a(f's_mov_b32 s{sCnt}, 8')
    a('.p2align 6')
    a(f'{label}_loop:')
    for t in range(4):
        for q in range(2):
            for l in unit(t, q, False): a(l)
    a(f's_sub_u32 s{sCnt}, s{sCnt}, 1')
    a(f's_cmp_eq_u32 s{sCnt}, {8-PRIO_PASSES}')
    a(f's_cbranch_scc0 {label}_kp')
    a('s_setprio 0')
    a(f'{label}_kp:')
    a(f's_cmp_lg_u32 s{sCnt}, 0')
    a(f's_cbranch_scc1 {label}_loop')
    a('s_setprio 0')
    a(mf(vO+16, vV+24, vP+8, vO+16))
    a(mf(vO+16, vV+28, vP+12, vO+16))
    st.mark(a)
    a(f'v_mul_f32 v{vT0}, v{vNrm}, v{vMulT}')
    a(f'v_cmp_nle_f32 vcc, v{vT0}, v{vThr}')
    a('s_cmp_lg_u64 vcc, 0')
    a(f's_cbranch_scc1 {label}_slow')
    a(f'{label}_fin:')
    a('s_waitcnt vmcnt(0)')
    a(f'v_lshlrev_b32 v{vT0}, 4, v{vL}')
    a(f's_mul_i32 s10, s{sWv}, 3072')
    a(f's_add_u32 s10, s10, {L_OX}')
    a(f'v_add_u32 v{vT1}, s10, v{vT0}')
    a(f's_xor_b32 s11, s{sWv}, 4')
    a(f's_mul_i32 s11, s11, 3072')
    a(f's_add_u32 s11, s11, {L_OX}')
    a(f'v_add_u32 v{vT2}, s11, v{vT0}')
    X = vS
    a(f'v_mov_b32 v{X}, v{vO+16+8}')
    a(f'v_mov_b32 v{X+1}, v{vM+1}')
    a(f'ds_write_b128 v{vT1}, v[{vO+16}:{vO+19}]')
    a(f'ds_write_b128 v{vT1}, v[{vO+20}:{vO+23}] offset:1024')
    a(f'ds_write_b64 v{vT1}, v[{X}:{X+1}] offset:2048')
    a('s_waitcnt lgkmcnt(0)')
    a('s_barrier')
    R = vS+4
    a(f'ds_read_b128 v[{R}:{R+3}], v{vT2}')
    a(f'ds_read_b128 v[{R+4}:{R+7}], v{vT2} offset:1024')
    a(f'ds_read_b64 v[{R+8}:{R+9}], v{vT2} offset:2048')
    ssm.conv_send(a, sWv, vL, vCAcc, vT0)
    a('s_waitcnt lgkmcnt(8)')
    ma, mb, fa, fb = vM, R+9, vT1, vT2
    a(f'v_max_f32 v{vT3}, v{ma}, v{mb}')
    a(f'v_sub_f32 v{fa}, v{ma}, v{vT3}')
    a(f'v_sub_f32 v{fb}, v{mb}, v{vT3}')
    a(f'v_exp_f32 v{fa}, v{fa}')
    a(f'v_exp_f32 v{fb}, v{fb}')
    a(f'v_mul_f32 v{vT3}, v{fa}, v{vO+8}')
    a(f'v_fmac_f32 v{vT3}, v{fb}, v{R+8}')
    a(f'v_rcp_f32 v{vT3}, v{vT3}')
    a(f'v_mul_f32 v{fa}, v{fa}, v{vT3}')
    a(f'v_mul_f32 v{fb}, v{fb}, v{vT3}')
    for i in range(8):
        a(f'v_mul_f32 v{vO+i}, v{fa}, v{vO+i}')
        a(f'v_fmac_f32 v{vO+i}, v{fb}, v{R+i}')
    for i in range(4): a(f'v_cvt_pk_bf16_f32 v{vP+i}, v{vO+2*i}, v{vO+2*i+1}')
    a(f's_lshl_b32 s10, s{sTB}, 1')
    a(f's_add_u32 s10, s10, s{sKH}')
    a(f's_lshl_b32 s10, s10, 5')
    a(f's_lshl_b32 s11, s{sX}, 2')
    a(f's_add_u32 s10, s10, s11')
    a(f's_add_u32 s10, s10, s{sHd}')
    a(f's_lshl_b32 s10, s10, 10')
    a(f's_add_u32 s10, s10, {WS_O}')
    a(f'buffer_store_dwordx4 v[{vP}:{vP+3}], v{vKA}, s[{SWS}:{SWS+3}], s10 offen sc1')
    a('s_waitcnt vmcnt(0) lgkmcnt(0)')
    a('s_barrier')
    sIdO = 49
    a(f's_lshl_b32 s{sIdO}, s{sTB}, 3')
    a(f's_add_u32 s{sIdO}, s{sIdO}, s{sX}')
    wave0(a, f'{label}_fo', lambda: flag_store(a, F_O, sIdO, vT0))
    st.mark(a)
    ssm.conv_reduce(a, sWv, vL, vCAcc, vT0)
    a('s_waitcnt lgkmcnt(0)')
    a('s_barrier')
    ssm.y_store(a, SWS, sX, sTB, vCAcc, vT0, ' sc1')
    a(f's_lshl_b32 s10, s{sWv}, 13')
    a(f's_add_u32 s10, s10, 65536')
    for i in range(8):
        a(f's_add_u32 m0, s10, {1024*i}')
        a(f's_mov_b32 s35, {262144 + 4096*i}')
        a(f'buffer_load_dwordx4 v{vWoA}, s[{SC}:{SC+3}], s35 offen lds')
    a('s_waitcnt vmcnt(8)')
    a('s_barrier')
    a(f's_lshl_b32 s53, s{sX}, 5')
    a(f's_add_u32 s53, s53, s{sTB}')
    wave0(a, f'{label}_fy', lambda: flag_store(a, F_Y, 53, vT0))
    sCT, sKQ, sT, sCG = 50, 51, 52, 54
    a(f's_and_b32 s{sCT}, s{sWv}, 3')
    a(f's_lshr_b32 s{sKQ}, s{sWv}, 2')
    a(f's_lshl_b32 s{sT}, s{sTB}, 1')
    a(f's_and_b32 s10, s{sX}, 1')
    a(f's_add_u32 s{sT}, s{sT}, s10')
    a(f's_lshr_b32 s{sCG}, s{sX}, 1')
    srd(a, SA, pOUT, 2048*2048)
    vWA3, vOA3, vYo, vY = 14, 15, 8, 10
    a(f'v_bfe_u32 v{vT0}, v{vL}, 2, 2')
    a(f'v_lshrrev_b32 v{vT1}, 5, v{vL}')
    a(f'v_lshl_add_u32 v{vT1}, v{vT1}, 2, v{vT0}')
    a(f'v_xor_b32 v{vT3}, s{sCT}, v{vT0}')
    a(f'v_lshlrev_b32 v{vWA3}, 6, v{vT3}')
    a(f'v_lshl_add_u32 v{vWA3}, v{vT1}, 8, v{vWA3}')
    a(f'v_bfe_u32 v{vT2}, v{vL}, 4, 1')
    a(f'v_lshl_add_u32 v{vWA3}, v{vT2}, 5, v{vWA3}')
    a(f'v_and_b32 v{vT2}, 3, v{vL}')
    a(f'v_lshl_add_u32 v{vWA3}, v{vT2}, 3, v{vWA3}')
    a(f's_lshl_b32 s10, s{sKQ}, 16')
    a(f'v_add_u32 v{vWA3}, s10, v{vWA3}')
    a(f's_lshl_b32 s10, s{sKQ}, 14')
    a(f's_add_u32 s10, s10, {L_OF}')
    a(f'v_lshlrev_b32 v{vOA3}, 4, v{vL}')
    a(f'v_add_u32 v{vOA3}, s10, v{vOA3}')
    a(f'v_lshrrev_b32 v{vT0}, 3, v0')
    a(f's_lshl_b32 s10, s{sX}, 6')
    a(f'v_add_u32 v{vT0}, s10, v{vT0}')
    a(f'v_lshlrev_b32 v{vYo}, 12, v{vT0}')
    a(f'v_and_b32 v{vT0}, 7, v0')
    a(f'v_lshl_add_u32 v{vYo}, v{vT0}, 4, v{vYo}')
    a(f's_lshl_b32 s55, s{sTB}, 3')
    def po():
        flag_poll(a, f'{label}_plo', F_O, 55, 8, vT0)
        a('s_cmp_lg_u32 s2, 0')
        a(f's_cbranch_scc1 {label}_ne')
        a(f'v_mov_b32 v{vT0}, s{sNon}')
        a(f'v_mov_b32 v{vT0+1}, s{sNon+1}')
        a(f'v_mov_b32 v{vT0+2}, 0')
        a(f's_mov_b32 s8, {WS_EPOCH}')
        a('s_mov_b64 exec, 1')
        a(f'buffer_store_dwordx2 v[{vT0}:{vT0+1}], v{vT0+2}, s[{SWS}:{SWS+3}], s8 offen sc1')
        a('s_mov_b64 exec, -1')
        a(f'{label}_ne:')
    wave0(a, f'{label}_po', po)
    a('s_barrier')
    st.mark(a)
    a(f's_lshl_b32 s10, s{sT}, 15')
    a(f's_add_u32 s10, s10, {WS_O}')
    a(f's_lshl_b32 s11, s{sWv}, 12')
    a(f's_add_u32 s10, s10, s11')
    a(f's_add_u32 s11, s11, {L_OF}')
    a(f'v_lshlrev_b32 v{vT0}, 4, v{vL}')
    for i in range(4):
        a(f's_add_u32 m0, s11, {1024*i}')
        a(f's_add_u32 s35, s10, {1024*i}')
        a(f'buffer_load_dwordx4 v{vT0}, s[{SWS}:{SWS+3}], s35 offen sc1 lds')
    a(f's_lshl_b32 s55, s{sX}, 5')
    wave0(a, f'{label}_py', lambda: flag_poll(a, f'{label}_ply', F_Y, 55, 32, 32))
    a('s_waitcnt vmcnt(0)')
    a('s_barrier')
    a(f's_lshl_b32 s10, s{sTB}, 7')
    a(f's_add_u32 s10, s10, {WS_YT}')
    a(f'buffer_load_dwordx4 v[{vY}:{vY+3}], v{vYo}, s[{SWS}:{SWS+3}], s10 offen sc1')
    vAc3, vF3 = 16, 32
    def rd(h):
        b = vF3 + 8*(h%4)
        a(f'ds_read_b64_tr_b16 v[{b}:{b+1}], v{vWA3} offset:{4096*h}')
        a(f'ds_read_b64_tr_b16 v[{b+2}:{b+3}], v{vWA3} offset:{4096*h+2048}')
        a(f'ds_read_b128 v[{b+4}:{b+7}], v{vOA3} offset:{1024*h}')
    for h in range(3): rd(h)
    for h in range(16):
        if h+3 < 16: rd(h+3)
        a(f's_waitcnt lgkmcnt({3*min(3, 15-h)})')
        b = vF3 + 8*(h%4)
        a(mf(vAc3, b, b+4, None if h == 0 else vAc3))
    st.mark(a)
    a('s_barrier')
    a(f'v_lshlrev_b32 v{vT0}, 4, v{vL}')
    a(f's_lshl_b32 s10, s{sWv}, 11')
    a(f'v_add_u32 v{vT1}, s10, v{vT0}')
    a(f's_xor_b32 s11, s{sWv}, 4')
    a(f's_lshl_b32 s11, s11, 11')
    a(f'v_add_u32 v{vT2}, s11, v{vT0}')
    R = 32
    a(f's_cmp_eq_u32 s{sKQ}, 1')
    a(f's_cbranch_scc1 {label}_kq1')
    a(f'ds_write_b128 v{vT1}, v[{vAc3+8}:{vAc3+11}]')
    a(f'ds_write_b128 v{vT1}, v[{vAc3+12}:{vAc3+15}] offset:1024')
    for i in range(8): a(f'v_mov_b32 v{R+8+i}, v{vAc3+i}')
    a(f's_branch {label}_kqj')
    a(f'{label}_kq1:')
    a(f'ds_write_b128 v{vT1}, v[{vAc3}:{vAc3+3}]')
    a(f'ds_write_b128 v{vT1}, v[{vAc3+4}:{vAc3+7}] offset:1024')
    for i in range(8): a(f'v_mov_b32 v{R+8+i}, v{vAc3+8+i}')
    a(f'{label}_kqj:')
    YB = 32768
    a(f'v_lshrrev_b32 v{vT0}, 3, v0')
    a(f'v_mul_u32_u24 v{vT0}, 132, v{vT0}')
    a(f'v_and_b32 v{vT3}, 7, v0')
    a(f'v_lshl_add_u32 v{vT0}, v{vT3}, 4, v{vT0}')
    a('s_waitcnt vmcnt(0)')
    for i in range(4): a(f'ds_write_b32 v{vT0}, v{vY+i} offset:{YB+4*i}')
    a('s_waitcnt lgkmcnt(0)')
    a('s_barrier')
    a(f'ds_read_b128 v[{R}:{R+3}], v{vT2}')
    a(f'ds_read_b128 v[{R+4}:{R+7}], v{vT2} offset:1024')
    a(f'v_and_b32 v{vT0}, 7, v0')
    a(f'v_mul_u32_u24 v{vT0}, {8*132}, v{vT0}')
    a(f'v_lshrrev_b32 v{vT1}, 3, v0')
    a(f'v_lshl_add_u32 v{vT0}, v{vT1}, 1, v{vT0}')
    for e in range(8):
        a(f'ds_read_u16_d16{"_hi" if e%2 else ""} v{56+e}, v{vT0} offset:{YB+132*e}')
    a('s_waitcnt lgkmcnt(8)')
    for i in range(8): a(f'v_add_f32 v{R+i}, v{R+i}, v{R+8+i}')
    Q = 48
    for i in range(4): a(f'v_cvt_pk_bf16_f32 v{Q+i}, v{R+2*i}, v{R+2*i+1}')
    a(f'v_permlane32_swap_b32 v{Q}, v{Q+2}')
    a(f'v_permlane32_swap_b32 v{Q+1}, v{Q+3}')
    a(f'v_and_b32 v{vT0}, 31, v{vL}')
    a(f'v_lshlrev_b32 v{vT0}, 11, v{vT0}')
    a(f'v_lshrrev_b32 v{vT2}, 5, v{vL}')
    a(f'v_lshl_add_u32 v{vT0}, v{vT2}, 4, v{vT0}')
    a(f's_lshl_b32 s10, s{sT}, 16')
    a(f's_lshl_b32 s11, s{sCG}, 8')
    a(f's_add_u32 s10, s10, s11')
    a(f's_lshl_b32 s11, s{sCT}, 6')
    a(f's_add_u32 s10, s10, s11')
    a(f's_lshl_b32 s11, s{sKQ}, 5')
    a(f's_add_u32 s10, s10, s11')
    a(f'buffer_store_dwordx4 v[{Q}:{Q+3}], v{vT0}, s[{SA}:{SA+3}], s10 offen')
    a(f's_lshl_b32 s10, s{sTB}, 6')
    a(f'v_add_u32 v{vT1}, s10, v{vT1}')
    a(f'v_lshlrev_b32 v{vT1}, 11, v{vT1}')
    a(f'v_and_b32 v{vT2}, 7, v0')
    a(f'v_lshl_add_u32 v{vT1}, v{vT2}, 4, v{vT1}')
    a(f's_lshl_b32 s10, s{sX}, 7')
    a(f's_add_u32 s10, s10, 1024')
    a('s_waitcnt lgkmcnt(0)')
    for de in range(4): a(f'v_or_b32 v{vY+de}, v{56+2*de}, v{56+2*de+1}')
    a(f'buffer_store_dwordx4 v[{vY}:{vY+3}], v{vT1}, s[{SA}:{SA+3}], s10 offen')
    st.mark(a)
    st.flush(a)
    a(f'{label}_end:')
    a('s_endpgm')
    a(f'{label}_slow:')
    a('s_waitcnt vmcnt(0)')
    a(f's_lshl_b32 s{sOff}, s{sTB}, 11')
    for s in range(3):
        for l in tile_loads(s): a(l)
    for i in range(32): a(f'v_mov_b32 v{vO+i}, 0')
    for i in range(8): a(f'v_mov_b32 v{vP+8+i}, 0')
    a(f's_mov_b64 exec, s[{sMask}:{sMask+1}]')
    for i in range(8): a(f'v_mov_b32 v{vV+24+i}, 0')
    a('s_mov_b64 exec, -1')
    a(f'v_mov_b32 v{vM}, 0xff7fffff')
    a(f'v_mov_b32 v{vM+1}, 0xff7fffff')
    a('s_waitcnt vmcnt(6)')
    a(mf(vS, vK, vQ, None))
    a(f's_mov_b32 s{sCnt}, 8')
    a(f'{label}_sloop:')
    for t in range(4):
        for q in range(2):
            for l in unit(t, q, True): a(l)
    a(f's_sub_u32 s{sCnt}, s{sCnt}, 1')
    a(f's_cmp_lg_u32 s{sCnt}, 0')
    a(f's_cbranch_scc1 {label}_sloop')
    a(mf(vO+16, vV+24, vP+8, vO+16))
    a(mf(vO+16, vV+28, vP+12, vO+16))
    a(f's_branch {label}_fin')
    for l in ssm.idx_data(label): a(l)
    return NVGPR, LDS_TOTAL

def _dupmark(self, a):
    if not STAMP: return
    a(f's_memtime s[{70+2*self.n}:{71+2*self.n}]'); self.n += 1
St.dupmark = _dupmark
```

```python
from common import *
import struct, math

LK  = 0
LZ  = 4352
LW  = LZ + 2*16896
LRX = LZ
LC  = 72192
LU  = LC + 33280
LOX = LU + 15360
LY  = LOX + 24576
LDS_END = LY + 8192

def f32(x): return hex(struct.unpack('<I', struct.pack('<f', x))[0])

def bf16_round_int(l):
    if l < 256: return l
    s = l.bit_length() - 8
    q, r = l >> s, l & ((1 << s) - 1)
    half = 1 << (s-1)
    if r > half or (r == half and (q & 1)): q += 1
    return q << s

def ktab_off(l):
    if l < 0 or l > 2047: return 2048
    p = bf16_round_int(l)
    if p < 256: i, j = p & 7, p >> 3
    elif p < 512: r = p-256; i, j = 8 + ((r & 7) >> 1), r >> 3
    elif p < 1024: r = p-512; i, j = 12 + 2*(r >> 8) + ((r & 7) >> 2), (r & 255) >> 3
    elif p < 2048: r = p-1024; i, j = 16 + (r >> 8), (r & 255) >> 3
    else: i, j = 20, 0
    return i*64 + j*2

def index_table():
    out = []
    for mu in range(260):
        for e in range(12):
            m = 8*mu - 4 + e
            out.append(ktab_off(2048 - m) if m >= 1 else 2048)
    return out

def cmul(a, D, X, Y, T):
    a(f'v_pk_mul_f32 v[{T}:{T+1}], v[{X}:{X+1}], v[{Y}:{Y+1}] op_sel:[0,0] op_sel_hi:[0,1]')
    a(f'v_pk_fma_f32 v[{D}:{D+1}], v[{X}:{X+1}], v[{Y}:{Y+1}], v[{T}:{T+1}] op_sel:[1,1,0] op_sel_hi:[1,0,1] neg_lo:[0,1,0]')

def direct(a, D, p, vAl, vBe, t0, t1):
    a(f'v_mul_f32 v{t0}, {f32(float(p))}, v{vAl}')
    a(f'v_mul_f32 v{t1}, {f32(float(p))}, v{vBe}')
    a(f'v_exp_f32 v{t0}, v{t0}')
    a(f'v_fract_f32 v{t1}, v{t1}')
    a(f'v_cos_f32 v{D}, v{t1}')
    a(f'v_sin_f32 v{D+1}, v{t1}')
    a(f'v_mul_f32 v{D}, v{D}, v{t0}')
    a(f'v_mul_f32 v{D+1}, v{D+1}, v{t0}')

def bf16r(a, v):
    a(f'v_cvt_pk_bf16_f32 v{v}, v{v}, v{v}')
    a(f'v_lshlrev_b32 v{v}, 16, v{v}')

def kgen_loads(a, S, sX, sTB, sWv, vL, B):
    a(f's_lshl_b32 s50, s{sX}, 6')
    a(f's_lshl_b32 s51, s{sTB}, 1')
    a(f's_add_u32 s50, s50, s51')
    a(f's_and_b32 s51, s{sWv}, 1')
    a(f's_add_u32 s51, s50, s51')
    a(f's_lshl_b32 s52, s51, 8')
    a(f's_bfe_u32 s53, s{sWv}, 0x10001')
    a(f's_lshl_b32 s53, s53, 7')
    a(f's_add_u32 s52, s52, s53')
    a(f's_lshl_b32 s53, s51, 1')
    a(f'v_lshl_add_u32 v{B+6}, v{vL}, 1, s52')
    a(f'v_mov_b32 v{B+7}, s53')
    for i, k in enumerate(('la','ai','cr','ci')):
        a(f'global_load_ushort v{B+i}, v{B+6}, s[{S[k]}:{S[k]+1}]')
    a(f'global_load_ushort v{B+4}, v{B+7}, s[{S["ldt"]}:{S["ldt"]+1}]')
    a(f'global_load_ushort v{B+5}, v{B+7}, s[{S["dsk"]}:{S["dsk"]+1}]')

def kgen_tables(a, label, sWv, vL, B, T):
    la, ai, cr, ci, ldt = B, B+1, B+2, B+3, B+4
    LOG2E = 1.4426950408889634
    for r in (la, ai, cr, ci, ldt): a(f'v_lshlrev_b32 v{r}, 16, v{r}')
    a(f'v_mul_f32 v{ldt}, {f32(LOG2E)}, v{ldt}')
    a(f'v_mul_f32 v{la}, {f32(LOG2E)}, v{la}')
    a(f'v_exp_f32 v{ldt}, v{ldt}')
    a(f'v_exp_f32 v{la}, v{la}')
    bf16r(a, ldt); bf16r(a, la)
    al, be = T, T+1
    a(f'v_mul_f32 v{al}, v{la}, v{ldt}')
    a(f'v_mul_f32 v{al}, {f32(-LOG2E)}, v{al}')
    a(f'v_mul_f32 v{be}, v{ai}, v{ldt}')
    a(f'v_mul_f32 v{be}, {f32(1/(2*math.pi))}, v{be}')
    ad = T+2
    a(f's_and_b32 s54, s{sWv}, 1')
    a(f's_mul_i32 s54, s54, 16896')
    a(f's_bfe_u32 s55, s{sWv}, 0x10001')
    a(f's_lshl_b32 s55, s55, 8')
    a(f's_add_u32 s54, s54, s55')
    a(f'v_lshl_add_u32 v{ad}, v{vL}, 2, s54')
    t0, t1, pk = T+3, T+4, T+5
    Z, Z8, TT, Z1, Z2, Z4, Z256, Z512, Z1024, W, W2 = T+6, T+8, T+10, T+12, T+14, T+16, T+18, T+20, T+22, T+24, T+26
    a(f's_cmp_ge_u32 s{sWv}, 4')
    a(f's_cbranch_scc1 {label}_hi')
    direct(a, Z8, 8, al, be, t0, t1)
    a(f'v_mov_b32 v{pk}, 0x3f80')
    a(f'ds_write_b32 v{ad}, v{pk} offset:{LZ}')
    a(f'v_cvt_pk_bf16_f32 v{pk}, v{Z8}, v{Z8+1}')
    a(f'ds_write_b32 v{ad}, v{pk} offset:{LZ+528}')
    cur = Z8
    for j in range(2, 32):
        nxt = Z if cur != Z else W
        cmul(a, nxt, cur, Z8, TT)
        p = pk if j % 2 else t0
        a(f'v_cvt_pk_bf16_f32 v{p}, v{nxt}, v{nxt+1}')
        a(f'ds_write_b32 v{ad}, v{p} offset:{LZ+528*j}')
        cur = nxt
    a(f's_branch {label}_tj')
    a(f'{label}_hi:')
    a(f'v_add_u32 v{ad}, {LW}, v{ad}')
    direct(a, Z1, 1, al, be, t0, t1)
    direct(a, Z256, 256, al, be, t0, t1)
    direct(a, Z512, 512, al, be, t0, t1)
    direct(a, Z1024, 1024, al, be, t0, t1)
    cmul(a, Z2, Z1, Z1, TT)
    cmul(a, Z4, Z2, Z2, TT)
    W0 = Z8
    a(f'v_mul_f32 v{W0}, v{cr}, v{ldt}')
    a(f'v_mul_f32 v{W0+1}, v{ci}, v{ldt}')
    a(f'v_add_f32 v{W0}, v{W0}, v{W0}')
    a(f'v_add_f32 v{W0+1}, v{W0+1}, v{W0+1}')
    cnt = [0]
    def put(i, r):
        p = pk if cnt[0] % 2 else t0
        cnt[0] += 1
        a(f'v_cvt_pk_bf16_f32 v{p}, v{r}, -v{r+1}')
        a(f'ds_write_b32 v{ad}, v{p} offset:{528*i}')
    put(0, W0)
    def chain(i0, start, seq):
        cur = start; i = i0
        for f in seq:
            nxt = W if cur != W else W2
            cmul(a, nxt, cur, f, TT)
            put(i, nxt); cur = nxt; i += 1
        return cur
    chain(1, W0, [Z1]*7)
    chain(8, W0, [Z256, Z2, Z2, Z2])
    cur = chain(12, W0, [Z512])
    cmul(a, Z, cur, Z4, TT); put(13, Z)
    cur = chain(14, cur, [Z256])
    cmul(a, Z, cur, Z4, TT); put(15, Z)
    chain(16, W0, [Z1024, Z256, Z256, Z256, Z256])
    a(f'{label}_tj:')

def kgen_gemm(a, sWv, vL, vDs, T, sDsOn):
    a(f's_and_b32 s54, s{sWv}, 1')
    a(f's_mul_i32 s55, s54, 16896')
    a(f's_bfe_u32 s56, s{sWv}, 0x10001')
    a(f's_lshr_b32 s57, s{sWv}, 2')
    aA, aB, t = T, T+1, T+2
    a(f'v_and_b32 v{t}, 15, v{vL}')
    a(f'v_mul_u32_u24 v{t}, 528, v{t}')
    a(f'v_lshrrev_b32 v{t+1}, 4, v{vL}')
    a(f'v_lshl_add_u32 v{t}, v{t+1}, 4, v{t}')
    a(f's_mul_i32 s58, s56, {16*528}')
    a(f's_add_u32 s58, s58, s55')
    a(f's_add_u32 s58, s58, {LW}')
    a(f'v_add_u32 v{aA}, s58, v{t}')
    a(f's_mul_i32 s58, s57, {16*528}')
    a(f's_add_u32 s58, s58, s55')
    a(f's_add_u32 s58, s58, {LZ}')
    a(f'v_add_u32 v{aB}, s58, v{t}')
    F = T+4
    for s in range(8):
        a(f'ds_read_b128 v[{F+8*s}:{F+8*s+3}], v{aA} offset:{64*s}')
        if s == 7: pass
    for s in range(8):
        a(f'ds_read_b128 v[{F+8*s+4}:{F+8*s+7}], v{aB} offset:{64*s}')
    D = F + 64
    for s in range(8):
        a(f's_waitcnt lgkmcnt({7-s})')
        a(f'v_mfma_f32_16x16x32_bf16 v[{D}:{D+3}], v[{F+8*s}:{F+8*s+3}], v[{F+8*s+4}:{F+8*s+7}], ' + ('0' if s == 0 else f'v[{D}:{D+3}]'))
    a(f's_or_b32 s58, s56, s57')
    a(f's_cmp_eq_u32 s58, 0')
    a(f's_cselect_b32 s58, 1, 0')
    a(f'v_lshlrev_b32 v{vDs}, 16, v{vDs}')
    a(f'v_cmp_gt_u32 vcc, s58, v{vL}')
    a(f'v_cndmask_b32 v{vDs}, 0, v{vDs}, vcc')
    a(f'v_lshrrev_b32 v{t}, 4, v{vL}')
    a(f'v_lshlrev_b32 v{t}, 8, v{t}')
    a(f'v_and_b32 v{t+1}, 15, v{vL}')
    a(f'v_lshl_add_u32 v{t}, v{t+1}, 1, v{t}')
    a(f's_mul_i32 s58, s54, 2112')
    a(f's_lshl_b32 s59, s56, 10')
    a(f's_add_u32 s58, s58, s59')
    a(f's_lshl_b32 s59, s57, 5')
    a(f's_add_u32 s58, s58, s59')
    a(f'v_add_u32 v{t}, s58, v{t}')
    a(f'v_add_f32 v{D}, v{D}, v{vDs}')
    for r in range(4):
        a(f'v_cvt_pk_bf16_f32 v{F+r}, v{D+r}, v{D+r}')
    for r in range(4):
        a(f'ds_write_b16 v{t}, v{F+r} offset:{LK+64*r}')
    a(f'v_mov_b32 v{t+1}, 0')
    a(f'v_mov_b32 v{t}, 0')
    a(f'ds_write_b32 v{t}, v{t+1} offset:{LK+2048}')
    a(f'ds_write_b32 v{t}, v{t+1} offset:{LK+2112+2048}')

def idx_loads(a, label, I, T, tlabel=None):
    tlabel = tlabel or label
    a(f's_getpc_b64 s[56:57]')
    a(f'{label}_pc:')
    a(f's_add_u32 s56, s56, {tlabel}_idx-{label}_pc')
    a(f's_addc_u32 s57, s57, 0')
    a(f'v_and_b32 v{T}, 255, v0')
    a(f'v_mul_u32_u24 v{T}, 24, v{T}')
    a(f'global_load_dwordx2 v[{I}:{I+1}], v{T}, s[56:57]')
    a(f'global_load_dwordx2 v[{I+2}:{I+3}], v{T}, s[56:57] offset:8')
    a(f'global_load_dwordx2 v[{I+4}:{I+5}], v{T}, s[56:57] offset:16')
    a(f'v_and_b32 v{T}, 3, v0')
    a(f'v_mul_u32_u24 v{T}, 24, v{T}')
    a(f'v_add_u32 v{T}, {256*24}, v{T}')
    a(f'global_load_dwordx2 v[{I+6}:{I+7}], v{T}, s[56:57]')
    a(f'global_load_dwordx2 v[{I+8}:{I+9}], v{T}, s[56:57] offset:8')
    a(f'global_load_dwordx2 v[{I+10}:{I+11}], v{T}, s[56:57] offset:16')

def idx_data(label):
    t = index_table()
    L = [f'.p2align 4', f'{label}_idx:']
    for i in range(0, len(t), 12):
        L.append('.short ' + ', '.join(str(x) for x in t[i:i+12]))
    return L

def copies(a, sWv, I, T):
    a(f's_lshr_b32 s54, s{sWv}, 2')
    a(f's_mul_i32 s55, s54, {2112 * 0x10001}')
    a(f's_mul_i32 s56, s54, 16640')
    A = T
    Wb = T+12
    Sb = T+18
    ad = T+24
    for rnd in range(2):
        Ix = I + 6*rnd
        if rnd == 1:
            a(f'v_and_b32 v{ad}, 255, v0')
            a(f'v_cmp_gt_u32 vcc, 4, v{ad}')
            a(f's_and_saveexec_b64 s[58:59], vcc')
        for d in range(6):
            a(f'v_add_u32 v{Ix+d}, s55, v{Ix+d}')
            a(f'v_and_b32 v{A+2*d}, 0xffff, v{Ix+d}')
            a(f'v_lshrrev_b32 v{A+2*d+1}, 16, v{Ix+d}')
        for e in range(12):
            a(f'ds_read_u16_d16{"_hi" if e%2 else ""} v{A+e}, v{A+e} offset:{LK}')
        if rnd == 0:
            a(f'v_and_b32 v{ad}, 255, v0')
            a(f'v_lshlrev_b32 v{ad}, 4, v{ad}')
        else:
            a(f'v_and_b32 v{ad}, 3, v0')
            a(f'v_lshlrev_b32 v{ad}, 4, v{ad}')
            a(f'v_add_u32 v{ad}, 4096, v{ad}')
        a(f'v_add_u32 v{ad}, s56, v{ad}')
        a(f'v_add_u32 v{ad}, {LC}, v{ad}')
        a('s_waitcnt lgkmcnt(0)')
        for d in range(6): a(f'v_or_b32 v{Wb+d}, v{A+2*d}, v{A+2*d+1}')
        for k in range(5): a(f'v_alignbit_b32 v{Sb+k}, v{Wb+k+1}, v{Wb+k}, 16')
        a(f'ds_write_b128 v{ad}, v[{Wb+2}:{Wb+5}]')
        a(f'ds_write_b128 v{ad}, v[{Sb}:{Sb+3}] offset:{3*4160}')
        a(f'v_add_u32 v{ad+1}, 4160, v{ad}')
        a(f'ds_write2_b32 v{ad+1}, v{Sb+1}, v{Sb+2} offset0:0 offset1:1')
        a(f'ds_write2_b32 v{ad+1}, v{Sb+3}, v{Sb+4} offset0:2 offset1:3')
        a(f'v_add_u32 v{ad+1}, 8320, v{ad}')
        a(f'ds_write2_b32 v{ad+1}, v{Wb+1}, v{Wb+2} offset0:0 offset1:1')
        a(f'ds_write2_b32 v{ad+1}, v{Wb+3}, v{Wb+4} offset0:2 offset1:3')
        if rnd == 1:
            a(f's_mov_b64 exec, s[58:59]')

def u_load(a, SWS, sX, sTB, U, T):
    a(f's_lshl_b32 s54, s{sX}, 6')
    a(f's_lshl_b32 s55, s{sTB}, 1')
    a(f's_add_u32 s54, s54, s55')
    a(f's_lshl_b32 s54, s54, 12')
    a(f's_add_u32 s54, s54, {WS_UT}')
    a(f'v_lshlrev_b32 v{T}, 4, v0')
    a(f'buffer_load_dwordx4 v[{U}:{U+3}], v{T}, s[{SWS}:{SWS+3}], s54 offen sc1')

def u_stage(a, sWv, U, T):
    a(f's_lshr_b32 s54, s{sWv}, 2')
    a(f's_mul_i32 s54, s54, 7680')
    a(f's_add_u32 s54, s54, {LU}')
    a(f'v_and_b32 v{T}, 255, v0')
    a(f'v_lshrrev_b32 v{T+1}, 2, v{T}')
    a(f'v_mul_u32_u24 v{T+1}, 80, v{T+1}')
    a(f'v_and_b32 v{T+2}, 3, v0')
    a(f'v_lshl_add_u32 v{T+1}, v{T+2}, 4, v{T+1}')
    a(f'v_add_u32 v{T+1}, s54, v{T+1}')
    a(f'ds_write_b128 v{T+1}, v[{U}:{U+3}] offset:2560')
    a(f'v_lshlrev_b32 v{T+1}, 4, v{T}')
    a(f'v_add_u32 v{T+1}, s54, v{T+1}')
    for i in range(4): a(f'v_mov_b32 v{T+4+i}, 0')
    a(f'v_cmp_gt_u32 vcc, 160, v{T}')
    a(f's_and_saveexec_b64 s[58:59], vcc')
    a(f'ds_write_b128 v{T+1}, v[{T+4}:{T+7}]')
    a(f's_mov_b64 exec, s[58:59]')

def conv_addr(a, sWv, vL, vCAa, vCBa, T):
    a(f's_lshr_b32 s54, s{sWv}, 2')
    a(f's_and_b32 s55, s{sWv}, 3')
    a(f's_mul_i32 s56, s54, 16640')
    a(f's_lshl_b32 s57, s55, 9')
    a(f's_sub_u32 s56, s56, s57')
    a(f's_add_u32 s56, s56, {LC + 4096 - 2048}')
    a(f'v_and_b32 v{T}, 3, v{vL}')
    a(f'v_mul_u32_u24 v{vCAa}, 4160, v{T}')
    a(f'v_lshrrev_b32 v{T}, 5, v{vL}')
    a(f'v_lshl_add_u32 v{vCAa}, v{T}, 4, v{vCAa}')
    a(f'v_bfe_u32 v{T}, v{vL}, 2, 3')
    a(f'v_lshlrev_b32 v{T}, 3, v{T}')
    a(f'v_sub_u32 v{vCAa}, v{vCAa}, v{T}')
    a(f'v_add_u32 v{vCAa}, s56, v{vCAa}')
    a(f's_mul_i32 s56, s54, 7680')
    a(f's_mul_i32 s57, s55, 640')
    a(f's_sub_u32 s56, s56, s57')
    a(f's_add_u32 s56, s56, {LU + 2560}')
    a(f'v_and_b32 v{T}, 31, v{vL}')
    a(f'v_mul_u32_u24 v{vCBa}, 80, v{T}')
    a(f'v_lshrrev_b32 v{T}, 5, v{vL}')
    a(f'v_lshl_add_u32 v{vCBa}, v{T}, 4, v{vCBa}')
    a(f'v_add_u32 v{vCBa}, s56, v{vCBa}')

def conv_reads(vCAa, vCBa, vF, ks):
    A1, A2, B1, B2 = vF, vF+4, vF+8, vF+12
    o = 32*ks
    return [f'ds_read_b64 v[{A1}:{A1+1}], v{vCAa} offset:{2048+o}',
            f'ds_read_b64 v[{A1+2}:{A1+3}], v{vCAa} offset:{2048+o+8}',
            f'ds_read_b128 v[{B1}:{B1+3}], v{vCBa} offset:{o}',
            f'ds_read_b128 v[{B2}:{B2+3}], v{vCBa} offset:{2560+o}',
            f'ds_read_b64 v[{A2}:{A2+1}], v{vCAa} offset:{o}',
            f'ds_read_b64 v[{A2+2}:{A2+3}], v{vCAa} offset:{o+8}']

def conv_mfmas(vAcc, vF):
    A1, A2, B1, B2 = vF, vF+4, vF+8, vF+12
    m = lambda D, A, B: f'v_mfma_f32_32x32x16_bf16 v[{D}:{D+15}], v[{A}:{A+3}], v[{B}:{B+3}], v[{D}:{D+15}]'
    return [m(vAcc, A1, B1), m(vAcc+16, A1, B2), m(vAcc+16, A2, B1)]

def conv_send(a, sWv, vL, vAcc, T):
    a(f's_lshr_b32 s54, s{sWv}, 2')
    a(f's_and_b32 s55, s{sWv}, 3')
    a(f's_lshl_b32 s56, s54, 15')
    a(f's_lshl_b32 s57, s55, 11')
    a(f's_add_u32 s57, s57, s56')
    a(f's_add_u32 s57, s57, {LRX}')
    a(f'v_lshl_add_u32 v{T+3}, v{vL}, 4, s57')
    for j in range(4):
        a(f'ds_write_b128 v{T+3}, v[{vAcc+4*j}:{vAcc+4*j+3}] offset:{8192*j}')
        a(f'ds_write_b128 v{T+3}, v[{vAcc+16+4*j}:{vAcc+16+4*j+3}] offset:{8192*j+1024}')

def conv_reduce(a, sWv, vL, vAcc, T):
    a(f's_lshr_b32 s54, s{sWv}, 2')
    a(f's_and_b32 s55, s{sWv}, 3')
    a(f's_lshl_b32 s56, s54, 15')
    a(f's_lshl_b32 s57, s55, 13')
    a(f's_add_u32 s57, s57, s56')
    a(f's_add_u32 s57, s57, {LRX}')
    a(f'v_lshl_add_u32 v{T}, v{vL}, 4, s57')
    R = vAcc
    for s in range(4):
        a(f'ds_read_b128 v[{R+8*s}:{R+8*s+3}], v{T} offset:{2048*s}')
        a(f'ds_read_b128 v[{R+8*s+4}:{R+8*s+7}], v{T} offset:{2048*s+1024}')
    a(f'v_and_b32 v{T}, 31, v{vL}')
    a(f'v_lshlrev_b32 v{T}, 6, v{T}')
    a(f'v_lshrrev_b32 v{T+1}, 5, v{vL}')
    a(f'v_lshl_add_u32 v{T}, v{T+1}, 3, v{T}')
    a(f's_lshl_b32 s56, s54, 12')
    a(f's_lshl_b32 s57, s55, 4')
    a(f's_add_u32 s56, s56, s57')
    a(f's_add_u32 s56, s56, {LY}')
    a(f'v_add_u32 v{T}, s56, v{T}')
    a('s_waitcnt lgkmcnt(0)')
    for i in range(8):
        a(f'v_add_f32 v{R+i}, v{R+i}, v{R+8+i}')
        a(f'v_add_f32 v{R+16+i}, v{R+16+i}, v{R+24+i}')
    for i in range(8): a(f'v_add_f32 v{R+i}, v{R+i}, v{R+16+i}')
    for i in range(4): a(f'v_cvt_pk_bf16_f32 v{R+16+i}, v{R+2*i}, v{R+2*i+1}')
    a(f'ds_write_b64 v{T}, v[{R+16}:{R+17}]')
    a(f'ds_write_b64 v{T}, v[{R+18}:{R+19}] offset:2048')

def y_store(a, SWS, sX, sTB, R, T, flags=''):
    a(f'v_lshlrev_b32 v{T}, 4, v0')
    a(f'v_add_u32 v{T+1}, {LY}, v{T}')
    a(f'ds_read_b128 v[{R}:{R+3}], v{T+1}')
    a(f's_lshl_b32 s54, s{sX}, 6')
    a(f's_lshl_b32 s55, s{sTB}, 1')
    a(f's_add_u32 s54, s54, s55')
    a(f's_lshl_b32 s54, s54, 12')
    a(f's_add_u32 s54, s54, {WS_YT}')
    a('s_waitcnt lgkmcnt(0)')
    a(f'buffer_store_dwordx4 v[{R}:{R+3}], v{T}, s[{SWS}:{SWS+3}], s54 offen{flags}')

def conv_finish(a, SWS, sX, sTB, sWv, vL, vAcc, T):
    conv_send(a, sWv, vL, vAcc, T)
    a('s_waitcnt lgkmcnt(0)')
    a('s_barrier')
    conv_reduce(a, sWv, vL, vAcc, T)
    a('s_waitcnt lgkmcnt(0)')
    a('s_barrier')
    y_store(a, SWS, sX, sTB, vAcc, T)
```

```python
import sys, os
sys.path.insert(0, os.path.dirname(__file__))
from common import *
import importlib

HEADER = open('cdna_kernels/'+NAME+'.s.ref').read().split('; Override launch geometry')[0]

def build(kernels, out, verbose=False):
    body=[]; descs=[]; launches=[]
    for label, gen, grid, block in kernels:
        a = Asm()
        vg, lds = gen(a, label)
        lines, pad = fix_hazards(a.lines, verbose)
        print(f'{label}: {sum(1 for l in lines if isinstance(l,str) and not l.endswith(":") and not l.startswith((";",".")))} instrs, {pad} nop states inserted, vgpr {vg}, lds {lds}')
        body += kernel_header(label) + lines
        descs.append(kernel_desc(label, vg, 102))
        launches.append(f'; @launch kernel={label} grid=({grid},1,1) block=({block},1,1) lds={lds}')
    if len(kernels) == 1 and kernels[0][0] == NAME+'_kernel':
        launches = [launches[0].replace(f'kernel={NAME}_kernel ', '')]
    txt = HEADER + '\n'.join(launches) + '\n'
    txt += '.amdgcn_target "amdgcn-amd-amdhsa--gfx950"\n.text\n'
    txt += render(body)
    txt += '.section .rodata,"a"\n' + ''.join('.p2align 6\n'+d+'\n' for d in descs)
    open(out,'w').write(txt)

if __name__ == '__main__':
    import k1
    ks = [('k1_kernel', k1.gen_k1, 256, 512)]
    which = sys.argv[1] if len(sys.argv)>1 else 'k1'
    out = sys.argv[2] if len(sys.argv)>2 else 'test.s'
    if which in ('k12','all','k12n'):
        import k2
        ks.append(('k2_kernel', k2.gen_k2, 256, 512))
    if which == 'fused':
        import fused
        ks = [(NAME+'_kernel', fused.gen, 256, 512)]
    if which == 'all':
        import k3
        ks.append(('k3_kernel', k3.gen_k3, 256, 512))
    build(ks, out, verbose='-v' in sys.argv)
```
